```python
import torch

def _softmax(x, axis=-1):
    return torch.softmax(x, dim=axis)
def _gelu(x):
    return torch.nn.functional.gelu(x, approximate="tanh")
def _silu(x):
    return torch.nn.functional.silu(x)
def _sigmoid(x):
    return torch.sigmoid(x)
def _layernorm(x, axis=-1, eps=1e-5):
    m = x.mean(dim=axis, keepdim=True)
    v = x.var(dim=axis, keepdim=True, unbiased=False)
    return (x - m) / torch.sqrt(v + eps)
def _scatter_add(tgt, idx, src, axis=0):
    return tgt.clone().index_add_(axis, idx, src)
def _segment_sum(src, seg, n):
    out = torch.zeros((n,) + src.shape[1:], dtype=src.dtype)
    return out.index_add_(0, seg, src)
def _pad(x, pw):
    flat = tuple(v for pair in reversed(pw) for v in pair)
    return torch.nn.functional.pad(x, flat)

kernel_name = 'recurrent_scan__gqa_block_cached__moe_arch_mod__prompt'

def setup_inputs():

    _w = (lambda a: (lambda t: t.to(torch.bfloat16) if t.is_floating_point() else t)(torch.as_tensor(a)))
    def _A_setup():
        B, Sq, D = 1, 2048, 576
        Hq, Hkv, Sk, Dh = 32, 16, 2048, 128
        assert Hq % Hkv == 0, (Hq, Hkv)
        return {
            "x": _w((lambda *s: torch.randn(*s, dtype=torch.bfloat16) * 0.05)(B, Sq, D)),
            "k_cache": _w((lambda *s: torch.randn(*s, dtype=torch.bfloat16) * 0.8)(B, Hkv, Sk, Dh)),
            "v_cache": _w((lambda *s: torch.randn(*s, dtype=torch.bfloat16) * 0.2)(B, Hkv, Sk, Dh)),
            "wq": _w((lambda *s: torch.randn(*s, dtype=torch.bfloat16) * 0.8)(D, Hq * Dh) * (D ** -0.5)),
            "wo": _w((lambda *s: torch.randn(*s, dtype=torch.bfloat16) * 0.2)(Hq * Dh, D) * ((Hq * Dh) ** -0.5)),
        }
    _A_in = _A_setup()

    def _B_setup():
        B, S, D, F, C = 1, 2048, 576, 4608, 8
        return {
            "x": _w((lambda *s: torch.randn(*s, dtype=torch.bfloat16) * 0.05)(B, S, D)),
            "w_r": _w((lambda *s: torch.randn(*s, dtype=torch.bfloat16) * 0.2)(D)),
            "w_gate": _w((lambda *s: torch.randn(*s, dtype=torch.bfloat16) * 0.1)(D, F)),
            "w_up": _w((lambda *s: torch.randn(*s, dtype=torch.bfloat16) * 0.1)(D, F)),
            "w_down": _w((lambda *s: torch.randn(*s, dtype=torch.bfloat16) * 0.1)(F, D)),
        }
    _B_in = _B_setup()

    return {
        "A_x": _A_in["x"],
        "A_k_cache": _A_in["k_cache"],
        "A_v_cache": _A_in["v_cache"],
        "A_wq": _A_in["wq"],
        "A_wo": _A_in["wo"],
        "B_x": _B_in["x"],
        "B_w_r": _B_in["w_r"],
        "B_w_gate": _B_in["w_gate"],
        "B_w_up": _B_in["w_up"],
        "B_w_down": _B_in["w_down"],
    }

def reference(A_x, A_k_cache, A_v_cache, A_wq, A_wo, B_x, B_w_r, B_w_gate, B_w_up, B_w_down):
    def _A_ref(x, k_cache, v_cache, wq, wo):
        B, Sq, D = x.shape
        Hq, Dh = 32, 128
        Hkv = k_cache.shape[1]
        rep = Hq // Hkv
        q = (lambda x, *d: x.permute(*d))((x @ wq).reshape(B, Sq, Hq, Dh), 0, 2, 1, 3)
        k = (lambda x, n, axis: torch.repeat_interleave(x, n, dim=axis))(k_cache, rep, axis=1)
        v = (lambda x, n, axis: torch.repeat_interleave(x, n, dim=axis))(v_cache, rep, axis=1)
        scores = torch.einsum("bhqd,bhkd->bhqk", q, k) * (Dh ** -0.5)
        p = _softmax(scores, axis=-1)
        o = torch.einsum("bhqk,bhkd->bhqd", p, v)
        return (lambda x, *d: x.permute(*d))(o, 0, 2, 1, 3).reshape(B, Sq, Hq * Dh) @ wo

    def _B_ref(x, w_r, w_gate, w_up, w_down):
        B, S, D = x.shape
        C = 8
        r = x @ w_r
        idx = torch.argsort(-r, axis=-1)[:, :C]
        idx_e = (lambda x, n, axis: torch.repeat_interleave(x, n, dim=axis))(idx.reshape(B, C, 1), D, axis=2)
        x_sel = (lambda x, i, axis: torch.take_along_dim(x, i, dim=axis))(x, idx_e, axis=1)
        g = _silu(x_sel @ w_gate)
        u = x_sel @ w_up
        y = (g * u) @ w_down
        r_sel = _sigmoid((lambda x, i, axis: torch.take_along_dim(x, i, dim=axis))(r, idx, axis=1))
        y = y * r_sel.reshape(B, C, 1)
        b_off = (torch.arange(B) * S).reshape(B, 1)
        flat_idx = (idx + b_off).reshape(B * C)
        zero = (x * 0.0).reshape(B * S, D)
        upd = _scatter_add(zero, flat_idx, y.reshape(B * C, D), axis=0)
        return x + upd.reshape(B, S, D)

    x = A_x
    xn = _layernorm(x, axis=-1)
    s = _A_ref(xn, A_k_cache, A_v_cache, A_wq, A_wo)
    g = _silu(_B_ref(xn, B_w_r, B_w_gate, B_w_up, B_w_down))
    return x + s * g
```

```python
class Em:
    def __init__(self):
        self.L = []
        self.vm = 0
        self.ds = 0
        self.ds_done = -1
        self.ldmap = {}
        self.minN = 99
    def e(self, s):
        for line in s.split("\n"):
            line = line.strip()
            if line:
                self.L.append(line)
    def c(self, s):
        self.L.append("; " + s)
    def label(self, name):
        self.L.append(name + ":")
    def vmem(self, s):
        self.e(s); self.vm += 1; return self.vm - 1
    def dsop(self, s):
        self.e(s); self.ds += 1; return self.ds - 1
    def ds_load(self, s):
        import re
        m = re.match(r"ds_read\S* ([av])\[(\d+):(\d+)\]", s)
        idx = self.dsop(s)
        for r in range(int(m.group(2)), int(m.group(3)) + 1):
            self.ldmap[m.group(1) + str(r)] = idx
    def ds_all_done(self):
        self.e("s_waitcnt lgkmcnt(0)"); self.ds_done = self.ds - 1
    def need(self, regs, loose=8):
        idx = max([self.ldmap.get(r, -1) for r in regs] + [-1])
        if idx > self.ds_done:
            n = min(self.ds - 1 - idx, loose)
            self.minN = min(self.minN, self.ds - 1 - idx)
            self.e(f"s_waitcnt lgkmcnt({n})")
            self.ds_done = self.ds - 1 - n
    def mfma(self, s):
        import re
        regs = []
        ops = s.split(None, 1)[1].split(",")
        for o in ops[1:3]:
            m = re.match(r"\s*([av])\[(\d+):(\d+)\]", o)
            if m: regs += [m.group(1) + str(r) for r in range(int(m.group(2)), int(m.group(3)) + 1)]
        self.need(regs)
        self.e(s)
    def wait_vm(self, idx):
        n = self.vm - 1 - idx
        assert n >= 0
        self.e(f"s_waitcnt vmcnt({min(n, 63)})")
    def wait_ds(self, idx):
        n = self.ds - 1 - idx
        assert n >= 0
        self.e(f"s_waitcnt lgkmcnt({min(n, 15)})")
    def text(self):
        return "\n".join(self.L) + "\n"

def vr(a, n=1):
    return f"v{a}" if n == 1 else f"v[{a}:{a+n-1}]"
def ar(a, n=1):
    return f"a{a}" if n == 1 else f"a[{a}:{a+n-1}]"
def sr(a, n=1):
    return f"s{a}" if n == 1 else f"s[{a}:{a+n-1}]"

def srd(em, d, lo, hi, size):
    em.e(f"s_mov_b32 s{d}, s{lo}")
    em.e(f"s_and_b32 s{d+1}, s{hi}, 0xffff")
    em.e(f"s_mov_b32 s{d+2}, {size if isinstance(size, str) else hex(size)}")
    em.e(f"s_mov_b32 s{d+3}, 0x00020000")

def kernel_head(em, name):
    em.e(f".globl {name}")
    em.e(".p2align 8")
    em.e(f".type {name},@function")
    em.label(name)

def kernel_desc(name, vgpr, sgpr, accum):
    return (f".amdhsa_kernel {name}\n"
            f"  .amdhsa_next_free_vgpr {vgpr}\n"
            f"  .amdhsa_next_free_sgpr {sgpr}\n"
            f"  .amdhsa_accum_offset {accum}\n"
            f"  .amdhsa_group_segment_fixed_size 0\n"
            f"  .amdhsa_kernarg_size 104\n"
            f"  .amdhsa_user_sgpr_count 2\n"
            f"  .amdhsa_user_sgpr_kernarg_segment_ptr 1\n"
            f"  .amdhsa_system_sgpr_workgroup_id_x 1\n"
            f"  .amdhsa_float_denorm_mode_32 3\n"
            f".end_amdhsa_kernel\n")

WS_XNF = 0x0
WS_R = 0x240000
WS_MOE = 0x250000
WS_FLAGS = 0x260000
WS_OF = 0x400000
WS_PART = 0x1400000
WS_YP = 0x2000000
WS_WOF = 0x1A00000
WS_PROF = 0x3000000
WS_SIZE = 0x8000000

KA_X, KA_K, KA_V, KA_WQ, KA_WO, KA_BX, KA_WR, KA_WG, KA_WU, KA_WD, KA_OUT, KA_DBG, KA_WS = [8 * i for i in range(13)]
WS_STAT = 0x248000

def code_prefetch(em, start_label, end_label, wg_s, wave_s, lane_v, dst_v, tmp_v, s0, uniq, forward=False):
    e = em.e
    e(f"s_getpc_b64 s[{s0}:{s0+1}]")
    em.label(f"PC_{uniq}")
    if forward:
        e(f"s_add_u32 s{s0}, s{s0}, {start_label}-PC_{uniq}\ns_addc_u32 s{s0+1}, s{s0+1}, 0")
    else:
        e(f"s_sub_u32 s{s0}, s{s0}, PC_{uniq}-{start_label}\ns_subb_u32 s{s0+1}, s{s0+1}, 0")
    e(f"s_lshr_b32 s{s0+2}, s{wg_s}, 3\ns_lshl_b32 s{s0+2}, s{s0+2}, 2\ns_add_u32 s{s0+2}, s{s0+2}, s{wave_s}")
    e(f"s_min_u32 s{s0+2}, s{s0+2}, (({end_label}-{start_label})>>10)-1\ns_lshl_b32 s{s0+2}, s{s0+2}, 10")
    e(f"v_lshlrev_b32 v{tmp_v}, 4, v{lane_v}\nv_add_u32 v{tmp_v}, s{s0+2}, v{tmp_v}")
    return em.vmem(f"global_load_dwordx4 v[{dst_v}:{dst_v+3}], v{tmp_v}, s[{s0}:{s0+1}]")
```

```python
from asmlib import *

def dpp_reduce(em, v, t, op="v_add_f32"):
    for rot in (8, 4, 2, 1):
        em.e("s_nop 1")
        em.e(f"{op}_dpp v{t}, v{v}, v{v} row_ror:{rot} row_mask:0xf bank_mask:0xf")
        v, t = t, v
    return v

def bf16r(em, dst, src):
    em.e(f"v_cvt_pk_bf16_f32 v{dst}, v{src}, v{src}")
    em.e(f"v_lshlrev_b32 v{dst}, 16, v{dst}")

def k1(name="k1_ln_kernel"):
    em = Em()
    kernel_head(em, name)
    em.e("s_cmp_ge_u32 s2, 256\ns_cbranch_scc1 K1_END")
    em.e(f"s_load_dwordx2 s[4:5], s[0:1], {KA_X}")
    em.e(f"s_load_dwordx2 s[6:7], s[0:1], {KA_WR}")
    em.e(f"s_load_dwordx2 s[20:21], s[0:1], {KA_WS}")
    em.e("v_and_b32 v1, 15, v0")
    em.e("v_lshrrev_b32 v2, 4, v0")
    em.e("s_lshl_b32 s3, s2, 3")
    em.e("v_add_u32 v2, s3, v2")
    em.e("v_mul_u32_u24 v3, 0x480, v2")
    em.e("v_lshl_add_u32 v3, v1, 3, v3")
    em.e("v_lshlrev_b32 v4, 3, v1")
    em.e("s_waitcnt lgkmcnt(0)")
    srd(em, 8, 4, 5, 2048 * 1152)
    srd(em, 12, 6, 7, 1152)
    srd(em, 16, 20, 21, WS_SIZE)
    X, W, F = 10, 28, 50
    for i in range(9):
        em.e(f"buffer_load_dwordx2 v[{X+2*i}:{X+2*i+1}], v3, s[8:11], 0 offen offset:{i*128}")
    for i in range(9):
        em.e(f"buffer_load_dwordx2 v[{W+2*i}:{W+2*i+1}], v4, s[12:15], 0 offen offset:{i*128}")
    em.e("v_lshrrev_b32 v5, 4, v2")
    em.e("v_mul_u32_u24 v5, 0x4800, v5")
    em.e("v_lshrrev_b32 v6, 3, v1\nv_lshlrev_b32 v6, 10, v6\nv_add_u32 v5, v5, v6")
    em.e("v_and_b32 v6, 3, v1\nv_lshlrev_b32 v6, 4, v6\nv_and_b32 v7, 15, v2\nv_add_u32 v6, v6, v7\nv_lshlrev_b32 v6, 4, v6\nv_add_u32 v5, v5, v6")
    em.e("v_bfe_u32 v6, v1, 2, 1\nv_lshlrev_b32 v6, 3, v6\nv_add_u32 v5, v5, v6")
    if WS_XNF: em.e(f"v_add_u32 v5, {hex(WS_XNF)}, v5")
    em.e(f"v_lshlrev_b32 v8, 2, v2\nv_add_u32 v8, {hex(WS_R)}, v8")
    em.e("s_mov_b32 s22, 0x3ae38e39")
    em.e("s_mov_b32 s23, 0x3727c5ac")
    em.e("s_mov_b32 s24, 0xffff0000")
    em.e("s_waitcnt vmcnt(9)")
    for i in range(18):
        em.e(f"v_lshlrev_b32 v{F+2*i}, 16, v{X+i}")
        em.e(f"v_and_b32 v{F+2*i+1}, s24, v{X+i}")
    em.e(f"v_add_f32 v90, v{F}, v{F+1}\nv_add_f32 v91, v{F+2}, v{F+3}")
    for i in range(4, 36, 2):
        em.e(f"v_add_f32 v90, v90, v{F+i}\nv_add_f32 v91, v91, v{F+i+1}")
    em.e("v_add_f32 v90, v90, v91")
    dpp_reduce(em, 90, 91)
    em.e("v_mul_f32 v90, s22, v90")
    em.e(f"v_sub_f32 v92, v{F}, v90\nv_mul_f32 v93, v92, v92\nv_sub_f32 v92, v{F+1}, v90\nv_mul_f32 v94, v92, v92")
    for i in range(2, 36, 2):
        em.e(f"v_sub_f32 v92, v{F+i}, v90\nv_sub_f32 v95, v{F+i+1}, v90\nv_fmac_f32 v93, v92, v92\nv_fmac_f32 v94, v95, v95")
    em.e("v_add_f32 v93, v93, v94")
    dpp_reduce(em, 93, 94)
    em.e("v_mul_f32 v93, s22, v93")
    bf16r(em, 90, 90)
    bf16r(em, 93, 93)
    em.e("v_add_f32 v93, s23, v93")
    bf16r(em, 93, 93)
    em.e("v_sqrt_f32 v93, v93\ns_nop 0")
    bf16r(em, 93, 93)
    em.e("v_rcp_f32 v94, v93\ns_nop 0")
    em.e("v_mov_b32 v96, 0")
    em.e("s_waitcnt vmcnt(0)")
    for i in range(18):
        a, b = F + 2 * i, F + 2 * i + 1
        em.e(f"v_sub_f32 v{a}, v{a}, v90\nv_sub_f32 v{b}, v{b}, v90")
        em.e(f"v_cvt_pk_bf16_f32 v97, v{a}, v{b}")
        em.e(f"v_lshlrev_b32 v{a}, 16, v97\nv_and_b32 v{b}, s24, v97")
        em.e(f"v_mul_f32 v98, v{a}, v94\nv_mul_f32 v99, v{b}, v94")
        em.e(f"v_fma_f32 v{a}, -v98, v93, v{a}\nv_fma_f32 v{b}, -v99, v93, v{b}")
        em.e(f"v_fmac_f32 v98, v{a}, v94\nv_fmac_f32 v99, v{b}, v94")
        em.e(f"v_cvt_pk_bf16_f32 v{X+i}, v98, v99")
        em.e(f"v_dot2_f32_bf16 v96, v{X+i}, v{W+i}, v96")
    em.e("s_cmp_eq_u32 s2, 0\ns_cbranch_scc0 K1_NOZ")
    em.e(f"v_lshlrev_b32 v6, 3, v0\nv_add_u32 v6, {hex(WS_FLAGS)}, v6\nv_mov_b32 v100, 0\nv_mov_b32 v101, 0")
    em.e("buffer_store_dwordx2 v[100:101], v6, s[16:19], 0 offen")
    em.label("K1_NOZ")
    for i in range(9):
        em.e(f"s_movk_i32 s25, {i*2048}")
        em.e(f"buffer_store_dwordx2 v[{X+2*i}:{X+2*i+1}], v5, s[16:19], s25 offen")
    dpp_reduce(em, 96, 97)
    bf16r(em, 96, 96)
    em.e("v_cmp_eq_u32 vcc, 0, v1")
    em.e("s_and_saveexec_b64 s[26:27], vcc")
    em.e("s_cbranch_execz K1_END")
    em.e("buffer_store_dword v96, v8, s[16:19], 0 offen")
    em.label("K1_END")
    em.e("s_endpgm")
    return em.text(), kernel_desc(name, 104, 32, 104), f"; @launch kernel={name} grid=(256,1,1) block=(128,1,1) lds=0"
```

```python
from asmlib import *
import struct

S0 = 8
P0 = 72
NM = 136
Q0 = 152
KA = 216
VA = 220
DK = 228
DV = 232
WQA = 234
DW = 238
XB = 240
L16 = 244
TMP = 246
QACC = 8
AO = 0
AL = 128
AK = 144
AV = 176
AONE = 208
LDS_K = 0
LDS_V = 65536
LDS_X = 131072
LDS_TOTAL = 163840
SRD_K, SRD_V, SRD_WQ, SRD_WS, SRD_OF = 8, 12, 16, 20, 24
S_W4K = 30
S_MX = 31
S_KOFF = 32
S_LOOP = 33
S_WQOFF = 34
S_HEAD = 35
S_QB = 36
S_WAVE = 37
S_OFB = 38
S_VOFF = 39
S_C = 40
S_THR = 42
S_PASS = 43
S_X4 = 44
S_T = 50
S_T2 = 51

MF = "v_mfma_f32_16x16x32_bf16"
PV2 = [False]
AV2 = 212
SUMMODE = ['mfma']
CVTMODE = ['cvt']
def f2u(f): return struct.unpack("<I", struct.pack("<f", f))[0]

def Sreg(b, qs, kt): return S0 + b * 32 + qs * 8 + kt * 4
def Preg(b, qs): return P0 + b * 16 + qs * 4
def Qf(qs, s): return Q0 + (qs * 4 + s) * 4
def Oacc(T, qs): return AO + (T * 4 + qs) * 4
def Kf(kt, s): return AK + (kt * 4 + s) * 4
def Vf(T): return AV + T * 4

ORDER = {"wait": -1, "ds": 0, "vmem": 0, "salu": 1, "cvt": 2, "valu": 2, "exp": 3}
def cost(it): return 8 if it[0] == "exp" else 4 * (1 + it[1].count("\n"))

def pack(n, streams, prio, budget=8):
    out = [[] for _ in range(n + 1)]
    pos = {s: 0 for s in streams}
    for g in range(n + 1):
        used = 0
        b = budget if g < n else 10 ** 6
        progress = True
        while progress:
            progress = False
            for s in prio:
                if s not in streams or pos[s] >= len(streams[s]): continue
                it = streams[s][pos[s]]
                if it[2] > g or (used + cost(it) > b and not (used == 0 and cost(it) > b)): continue
                out[g].append(it); used += cost(it); pos[s] += 1; progress = True
                break
    for s in streams: assert pos[s] == len(streams[s]), s
    res = []
    for g in out:
        g2 = sorted(g, key=lambda it: ORDER[it[0]] if it[0] != "salu" else 0)
        res.append(g2)
    return res

TAGS = {}
def emit_item(em, it, prev):
    x = it[3] if len(it) > 3 else {}
    if x.get("needs"): em.need(x["needs"])
    if prev is not None and prev[0] == "salu" and "m0" in prev[1] and it[0] == "vmem" and not x.get("needs"):
        em.e("s_nop 0")
    if it[0] == "ds": em.ds_load(it[1])
    elif it[0] == "vmem":
        idx = em.vmem(it[1])
        if x.get("tag") is not None: TAGS[x["tag"]] = idx
    else: em.e(it[1])
def emit_packed(em, mf, packed):
    n = len(mf)
    for g in range(n):
        em.mfma(mf[g])
        prev = None
        for it in packed[g]:
            emit_item(em, it, prev); prev = it
    prev = None
    for it in packed[n]:
        emit_item(em, it, prev); prev = it

def emit_step(em, u, do_qk=True, do_pv=True, do_sm=True, first_pv=False, ld_k=True, ld_v=True, dma=(), order="A", pre=None, post=(), xds=()):
    bw = (u + 1) & 1; br = u & 1; pr = (u + 1) & 1
    kslot = ((u + 2) >> 1) & 3; khalf = (u + 2) & 1
    vslot = (u >> 1) & 3; vhalf = u & 1
    koff = LDS_K + kslot * 16384 + khalf * 8192
    voff = vslot * 16384 + vhalf * 8192
    mf = []; frees = []
    def qk(kt, s, qs):
        D = Sreg(bw, qs, kt)
        C = vr(NM + qs * 4, 4) if s == 0 else vr(D, 4)
        return f"{MF} {vr(D,4)}, {ar(Kf(kt,s),4)}, {vr(Qf(qs,s),4)}, {C}"
    def pv(T, qs):
        O = Oacc(T, qs)
        return f"{MF} {ar(O,4)}, {ar(Vf(T),4)}, {vr(Preg(pr,qs),4)}, {'0' if first_pv else ar(O,4)}"
    def sm(qs):
        Lr = AL + qs * 4
        return f"{MF} {ar(Lr,4)}, {ar(AONE,4)}, {vr(Preg(pr,qs),4)}, {'0' if first_pv else ar(Lr,4)}"
    def add(t, fr=()): mf.append(t); frees.append(list(fr))
    h = u & 1
    if PV2[0]:
        p0 = (u - h - 2) & 3; p1 = (p0 + 1) & 3
        def P4(b, qs): return P0 + b * 16 + qs * 4
        def V2(st_, d): return (AV if st_ == 0 else AV2) + d * 4
        def pvc(d, qs):
            O = Oacc(d, qs)
            return [f"{MF} {ar(O,4)}, {ar(V2(0,d),4)}, {vr(P4(p0,qs),4)}, {'0' if first_pv else ar(O,4)}",
                    f"{MF} {ar(O,4)}, {ar(V2(1,d),4)}, {vr(P4(p1,qs),4)}, {ar(O,4)}"]
        def smc(qs):
            Lr = AL + qs * 4
            return [f"{MF} {ar(Lr,4)}, {ar(AONE,4)}, {vr(P4(p0,qs),4)}, {'0' if first_pv else ar(Lr,4)}",
                    f"{MF} {ar(Lr,4)}, {ar(AONE,4)}, {vr(P4(p1,qs),4)}, {ar(Lr,4)}"]
    for i in range(8):
        if do_qk:
            if order == "A":
                kt, s = i >> 2, i & 3
                for qs in range(4): add(qk(kt, s, qs), [("K", i)] if qs == 3 else [])
            else:
                kt, qs = i >> 2, i & 3
                for s in range(4): add(qk(kt, s, qs), [("K", kt * 4 + s)] if qs == 3 else [])
        if do_pv and PV2[0]:
            d = 4 * h + (i >> 1)
            for q2 in (2 * (i & 1), 2 * (i & 1) + 1):
                a_, b_ = pvc(d, q2)
                add(a_); add(b_, [("V", d)] if q2 == 3 else [])
            if (i & 3) == 3:
                for t_ in smc(2 * h + (i >> 2)): add(t_)
        elif do_pv:
            for qs in range(4): add(pv(i, qs), [("V", i)] if qs == 3 else [])
            if (i & 1) and SUMMODE[0] == "mfma": add(sm(i >> 1))
    n = len(mf)
    def kld(i):
        kt, s = i >> 2, i & 3
        return f"ds_read_b128 {ar(Kf(kt,s),4)}, v{KA+s} offset:{koff + kt*4096}"
    def vld(i, j): return f"ds_read_b64_tr_b16 {ar(Vf(i)+2*j,2)}, v{VA+i} offset:{voff + j*4096}"
    def vld2(d):
        base = vslot * 16384
        return [f"ds_read_b64_tr_b16 {ar(V2(st_,d)+2*j,2)}, v{VA+d} offset:{base + st_*8192 + j*4096}" for st_ in range(2) for j in range(2)]
    dsl = []
    for g, fr in enumerate(frees):
        for kind, i in fr:
            if kind == "K" and ld_k: dsl.append((g, kld(i)))
            if kind == "V" and ld_v:
                if PV2[0]:
                    for t_ in vld2(i): dsl.append((g, t_))
                else:
                    dsl.append((g, vld(i, 0))); dsl.append((g, vld(i, 1)))
    if ld_k and not do_qk:
        for i in range(8): dsl.append((min(i * n // 10, n - 1), kld(i)))
    if ld_v and not do_pv:
        if PV2[0]:
            for k_, d in enumerate(range(4 * h, 4 * h + 4)):
                for t_ in vld2(d): dsl.append((min(k_ * n // 5, n - 1), t_))
        else:
            for i in range(8):
                for j in range(2): dsl.append((min(i * n // 10, n - 1), vld(i, j)))
    dsl.sort(key=lambda x: x[0])
    st = {}
    nds = len(dsl)
    st["ds"] = []
    for k, (g, t) in enumerate(dsl):
        st["ds"].append(("ds", t, g))
    if dma:
        m = len(dma)
        st["dma"] = [(d[0], d[1], min(3 + (k * (n - 10)) // m, n - 1), d[2] if len(d) > 2 else {}) for k, d in enumerate(dma)]
    if post:
        st["post"] = [(kind, t, n - 2) for kind, t in post]
    if xds:
        m = len(xds)
        st["xds"] = [("ds", t, min(4 + (k * (n - 12)) // m, n - 1)) for k, t in enumerate(xds)]
    if do_sm:
        st["exp"] = [("exp", f"v_exp_f32 v{S0+br*32+x}, v{S0+br*32+x}", (x * (n - 4)) // 32) for x in range(32)]
        est = [st["exp"][2 * j + 1][2] + 1 for j in range(16)]
        for itn in range(20):
            if CVTMODE[0] == "cvt":
                st["cvt"] = [("cvt", f"v_cvt_pk_bf16_f32 v{P0+((u&3) if PV2[0] else br)*16+j}, v{S0+br*32+2*j}, v{S0+br*32+2*j+1}", est[j]) for j in range(16)]
            else:
                st["cvt"] = [("cvt", f"v_perm_b32 v{P0+br*16+j}, v{S0+br*32+2*j+1}, v{S0+br*32+2*j}, s81", est[j]) for j in range(16)]
            if SUMMODE[0] == "dot2":
                st["sum"] = [("valu", f"v_dot2_f32_bf16 v{112+(j>>2)}, v{P0+br*16+j}, s82, v{112+(j>>2)}", est[j] + 2) for j in range(16)]
            packed = pack(n, st, ["exp", "cvt", "ds", "dma", "sum", "xds", "post"], budget=(8 if n > 40 else 16))
            eg = [g for g, items in enumerate(packed) for it in items if it[0] == "exp"]
            new = [eg[2 * j + 1] + 1 for j in range(16)]
            if all(a <= b for a, b in zip(new, est)): break
            est = [max(a, b) for a, b in zip(new, est)]
        else: raise RuntimeError("no fixpoint")
        tail = packed[n]
        kinds = [it[0] for it in tail]
        if "exp" in kinds: raise RuntimeError("exp in tail")
    else:
        packed = pack(n, st, ["ds", "dma", "xds", "post"])
    if pre: em.e(pre)
    emit_packed(em, mf, packed)
    return packed

def dma_k(slot):
    return [("salu", f"s_add_u32 m0, s{S_W4K}, {LDS_K + slot*16384}")] + \
           [("vmem", f"buffer_load_dwordx4 v{DK+i}, s[{SRD_K}:{SRD_K+3}], s{S_KOFF} offen offset:{i*1024} lds") for i in range(4)]
def dma_v(slot):
    return [("salu", f"s_add_u32 m0, s{S_W4K}, {LDS_V + slot*16384}")] + \
           [("vmem", f"buffer_load_dwordx4 v{DV+(i&1)}, s[{SRD_V}:{SRD_V+3}], s{S_VOFF} offen offset:{i*1024} lds") for i in range(4)]

def emit_setup(em):
    e = em.e
    e("s_cmp_ge_u32 s2, 256\ns_cbranch_scc1 K2_END")
    e(f"s_load_dwordx2 s[4:5], s[0:1], {KA_K}")
    e(f"s_load_dwordx2 s[6:7], s[0:1], {KA_V}")
    e(f"s_load_dwordx2 s[52:53], s[0:1], {KA_WQ}")
    e(f"s_load_dwordx2 s[54:55], s[0:1], {KA_WS}")
    e("v_and_b32 v1, 63, v0\nv_lshrrev_b32 v2, 6, v0\ns_nop 0")
    e(f"v_readfirstlane_b32 s{S_WAVE}, v2")
    e("s_lshr_b32 s28, s2, 3")
    e(f"s_and_b32 s3, s2, 1\ns_lshl_b32 s3, s3, 4\ns_lshr_b32 s29, s28, 1\ns_add_u32 s{S_HEAD}, s3, s29")
    e(f"s_and_b32 s3, s2, 6\ns_and_b32 s29, s28, 1\ns_add_u32 s{S_QB}, s3, s29")
    e(f"s_lshl_b32 s{S_W4K}, s{S_WAVE}, 12")
    e(f"s_lshl_b32 s{S_MX}, s{S_WAVE}, 11\ns_add_u32 s{S_MX}, s{S_MX}, {hex(LDS_X)}")
    e("v_and_b32 v3, 15, v1\nv_lshrrev_b32 v4, 4, v1")
    e(f"v_lshlrev_b32 v{L16}, 4, v1")
    for s in range(4):
        e(f"v_add_u32 v5, {4*s}, v4\nv_xor_b32 v5, v5, v3\nv_lshlrev_b32 v5, 4, v5\nv_lshl_add_u32 v{KA+s}, v3, 8, v5")
    e("v_bfe_u32 v5, v1, 2, 2\nv_and_b32 v6, 3, v1\nv_lshl_add_u32 v7, v4, 2, v5")
    e("v_and_b32 v8, 7, v7")
    e(f"v_lshlrev_b32 v9, 8, v7\nv_lshl_add_u32 v9, v6, 3, v9\nv_add_u32 v9, {hex(LDS_V)}, v9")
    for T in range(8):
        e(f"v_xor_b32 v10, {T}, v8\nv_lshl_add_u32 v{VA+T}, v10, 5, v9")
    e("v_lshrrev_b32 v10, 1, v6\nv_xor_b32 v10, v10, v8")
    e(f"v_and_b32 v11, 1, v6\nv_lshlrev_b32 v11, 4, v11\nv_lshl_add_u32 v11, v7, 8, v11\nv_add_u32 v11, {hex(LDS_X)}, v11")
    for s in range(4):
        e(f"v_xor_b32 v12, {2*s}, v10\nv_lshl_add_u32 v{WQA+s}, v12, 5, v11")
    for i in range(4):
        e(f"v_add_u32 v5, {4*i}, v4\nv_xor_b32 v5, v5, v3\nv_lshlrev_b32 v5, 4, v5\nv_lshl_add_u32 v5, v4, 8, v5\nv_add_u32 v{DK+i}, s{S_W4K}, v5")
    for i in range(2):
        e(f"v_add_u32 v5, {4*i}, v4\nv_lshlrev_b32 v5, 1, v5\nv_xor_b32 v5, v5, v3\nv_lshlrev_b32 v5, 4, v5\nv_lshl_add_u32 v5, v4, 8, v5\nv_add_u32 v{DV+i}, s{S_W4K}, v5")
    e(f"s_lshl_b32 s{S_T}, s{S_WAVE}, 16")
    for i in range(2):
        e(f"v_add_u32 v5, {4*i}, v4\nv_lshlrev_b32 v6, 1, v5\nv_xor_b32 v6, v6, v3\nv_lshlrev_b32 v6, 4, v6\nv_lshl_add_u32 v6, v5, 13, v6")
        e(f"v_add_u32 v6, s{S_T}, v6")
        if i: e(f"v_subrev_u32 v6, {1024*i}, v6")
        e(f"v_mov_b32 v{DW+i}, v6")
    e(f"s_lshl_b32 s{S_T}, s{S_QB}, 4\ns_lshl_b32 s{S_T2}, s{S_WAVE}, 2\ns_add_u32 s{S_T}, s{S_T}, s{S_T2}")
    e(f"s_lshl_b32 s{S_OFB}, s{S_T}, 17\ns_lshl_b32 s{S_T2}, s{S_HEAD}, 12\ns_add_u32 s{S_OFB}, s{S_OFB}, s{S_T2}")
    e(f"s_mul_i32 s{S_T}, s{S_T}, 18432")
    for qs in range(4):
        e(f"s_add_u32 s{S_T2}, s{S_T}, {qs*18432 + WS_XNF}\nv_add_u32 v{XB+qs}, s{S_T2}, v{L16}")
    for k in range(5): e(f"s_mov_b32 s{S_X4+k}, {k*4096}")
    e(f"s_lshl_b32 s{S_WQOFF}, s{S_HEAD}, 8")
    c = f2u(128 ** -0.5 * 1.4426950408889634)
    e(f"s_mov_b32 s{S_C}, {hex(c)}\ns_mov_b32 s{S_C+1}, {hex(c)}")
    e(f"s_mov_b32 s{S_THR}, 0x5f800000")
    e(f"s_mov_b32 s{S_PASS}, 0")
    for i in range(4): e(f"v_mov_b32 v{TMP}, 0x3f803f80\nv_accvgpr_write_b32 a{AONE+i}, v{TMP}")
    e("s_waitcnt lgkmcnt(0)")
    e(f"s_lshr_b32 s{S_T}, s{S_HEAD}, 1\ns_lshl_b32 s{S_T}, s{S_T}, 19")
    e(f"s_add_u32 s4, s4, s{S_T}\ns_addc_u32 s5, s5, 0\ns_add_u32 s6, s6, s{S_T}\ns_addc_u32 s7, s7, 0")
    srd(em, SRD_K, 4, 5, 524288)
    srd(em, SRD_V, 6, 7, 524288)
    srd(em, SRD_WQ, 52, 53, 576 * 8192)
    srd(em, SRD_WS, 54, 55, WS_SIZE)
    e(f"s_add_u32 s54, s54, {hex(WS_OF)}\ns_addc_u32 s55, s55, 0")
    srd(em, SRD_OF, 54, 55, 2048 * 4096 * 2)

def emit_qproj(em):
    e = em.e
    NK = 18
    tags = {}
    def wq_dma(sg):
        r = [("salu", f"s_add_u32 m0, s{S_MX}, {(sg & 3) * 8192}")]
        r += [("vmem", f"buffer_load_dwordx4 v{DW+i}, s[{SRD_WQ}:{SRD_WQ+3}], s{S_WQOFF} offen offset:{i*1024} lds", ("wq", sg)) for i in range(2)]
        r += [("salu", f"s_add_u32 s{S_WQOFF}, s{S_WQOFF}, {32*8192}")]
        return r
    def xn_ld(sg):
        r = []
        for qs in range(4):
            d = AO + ((sg & 7) * 4 + qs) * 4
            r.append(("vmem", f"buffer_load_dwordx4 {ar(d,4)}, v{XB+qs}, s[{SRD_WS}:{SRD_WS+3}], s{S_X4+(sg>>2)} offen offset:{(sg&3)*1024}", ("xn", sg)))
        return r
    def kv_init(kind, T):
        sreg = S_KOFF if kind == "K" else S_VOFF
        r = [("salu", f"s_mov_b32 s{sreg}, {T*16384}")]
        r += [(k, t) for k, t in (dma_k(T) if kind == "K" else dma_v(T))]
        return r
    def issue(items):
        prev = None
        for it in items:
            if it[0] == "vmem":
                if prev is not None and "m0" in prev[1] and prev[0] == "salu": e("s_nop 0")
                idx = em.vmem(it[1])
                if len(it) > 2: tags[it[2]] = idx
            else: e(it[1])
            prev = it
    def aset(sg): return AK + (sg & 1) * 32
    def a_ld(sg):
        r = []
        for t in range(8):
            s, half = t >> 1, t & 1
            for j in range(2):
                r.append(f"ds_read_b64_tr_b16 {ar(aset(sg)+t*4+2*j,2)}, v{WQA+s} offset:{(sg&3)*8192 + j*4096 + 8*half}")
        return r
    AHEAD = 5
    for sg in range(4):
        issue(wq_dma(sg)); issue(xn_ld(sg))
    issue(xn_ld(4))
    em.wait_vm(tags[("wq", 0)])
    e("s_barrier")
    for t in a_ld(0): em.ds_load(t)
    kvq = [("K", 0), ("K", 1), ("V", 0), ("K", 2), ("V", 1)]
    kv_at = {3: 0, 5: 1, 7: 2, 9: 3, 11: 4}
    for sg in range(NK):
        need = max(tags[("xn", sg)], tags[("wq", min(sg + 1, NK - 1))])
        em.wait_vm(need)
        em.ds_all_done()
        e("s_barrier")
        mf = []
        for t in range(8):
            for qs in range(4):
                acc = QACC + (t * 4 + qs) * 4
                b = AO + ((sg & 7) * 4 + qs) * 4
                C = "0" if sg == 0 else vr(acc, 4)
                mf.append(f"{MF} {vr(acc,4)}, {ar(aset(sg)+t*4,4)}, {ar(b,4)}, {C}")
        fill = [[] for _ in range(33)]
        if sg + 1 < NK:
            for k, t in enumerate(a_ld(sg + 1)): fill[(k * 3) // 2].append(("ds", t))
        vm = []
        if sg + 4 < NK: vm += wq_dma(sg + 4)
        if sg + AHEAD < NK: vm += xn_ld(sg + AHEAD)
        if sg in kv_at: vm += kv_init(*kvq[kv_at[sg]])
        for g in range(32):
            em.mfma(mf[g])
            for k, t in fill[g]: em.ds_load(t)
            if g % 2 == 1 and vm:
                take = [vm.pop(0)]
                while take[-1][0] == "salu" and vm: take.append(vm.pop(0))
                prev = None
                for it in take:
                    if it[0] == "vmem":
                        if prev is not None and prev[0] == "salu" and "m0" in prev[1]: e("s_nop 0")
                        idx = em.vmem(it[1])
                        if len(it) > 2: tags[it[2]] = idx
                    else: e(it[1])
                    prev = it
        issue(vm)
    e("s_nop 7\ns_nop 3")
    for qs in range(4):
        for s in range(4):
            for half in range(2):
                acc = QACC + ((2 * s + half) * 4 + qs) * 4
                e(f"v_pk_mul_f32 {vr(acc,2)}, {vr(acc,2)}, s[{S_C}:{S_C+1}]")
                e(f"v_pk_mul_f32 {vr(acc+2,2)}, {vr(acc+2,2)}, s[{S_C}:{S_C+1}]")
            for half in range(2):
                acc = QACC + ((2 * s + half) * 4 + qs) * 4
                e(f"v_cvt_pk_bf16_f32 v{Qf(qs,s)+2*half}, v{acc}, v{acc+1}")
                e(f"v_cvt_pk_bf16_f32 v{Qf(qs,s)+2*half+1}, v{acc+2}, v{acc+3}")

def emit_rowmax_across_groups(em, v, t):
    e = em.e
    e(f"v_mov_b32 v{t}, v{v}\ns_nop 1\nv_permlane16_swap_b32 v{v}, v{t}\nv_max_f32 v{v}, v{v}, v{t}")
    e(f"v_mov_b32 v{t}, v{v}\ns_nop 1\nv_permlane32_swap_b32 v{v}, v{t}\nv_max_f32 v{v}, v{v}, v{t}")

def emit_pre(em):
    e = em.e
    import k2new
    em.label("K2_PRE")
    e(f"s_waitcnt vmcnt({k2new.PRE_WAIT[0]})\ns_barrier")
    def kld(i, off):
        kt, s = i >> 2, i & 3
        return f"ds_read_b128 {ar(Kf(kt,s),4)}, v{KA+s} offset:{off + kt*4096}"
    for i in range(8): em.ds_load(kld(i, LDS_K))
    em.ds_all_done()
    for i in range(8):
        kt, s = i >> 2, i & 3
        for qs in range(4):
            D = Sreg(0, qs, kt)
            e(f"{MF} {vr(D,4)}, {ar(Kf(kt,s),4)}, {vr(Qf(qs,s),4)}, {'0' if s == 0 else vr(D,4)}")
        em.ds_load(kld(i, LDS_K + 8192))
    e("s_nop 7\ns_nop 3")
    e(f"s_cmp_eq_u32 s{S_PASS}, 0\ns_cbranch_scc0 K2_HAVEMAX")
    for qs in range(4):
        b = S0 + qs * 8
        m = TMP
        e(f"v_max3_f32 v{m}, v{b}, v{b+1}, v{b+2}\nv_max3_f32 v{m}, v{m}, v{b+3}, v{b+4}\nv_max3_f32 v{m}, v{m}, v{b+5}, v{b+6}\nv_max_f32 v{m}, v{m}, v{b+7}")
        emit_rowmax_across_groups(em, m, TMP + 1)
        for r in range(4): e(f"v_sub_f32 v{NM+qs*4+r}, 0, v{m}")
    em.label("K2_HAVEMAX")
    for qs in range(4):
        for x in range(8):
            e(f"v_add_f32 v{S0+qs*8+x}, v{S0+qs*8+x}, v{NM+qs*4}")
    em.ds_all_done()

def emit_final_pv(em):
    em.c("--- final PV")
    emit_step(em, 8, do_qk=False, do_sm=False, ld_k=False, ld_v=False)

def emit_epilogue(em, OST='', xsel=(), ts=False, pv=True):
    e = em.e
    if pv: emit_final_pv(em)
    e("s_nop 7\ns_nop 3")
    R = TMP
    for qs in range(4):
        e(f"v_accvgpr_read_b32 v{R+2*qs}, a{AL+qs*4}")
    e("s_nop 0")
    for qs in range(4):
        e(f"v_rcp_f32 v{R+2*qs}, v{R+2*qs}")
    e("s_nop 0")
    for qs in range(4):
        e(f"v_mov_b32 v{R+2*qs+1}, v{R+2*qs}")
    buf = 0
    for qs in range(4):
        e(f"s_add_u32 s{S_T}, s{S_OFB}, {qs*131072}")
        for sg in range(4):
            t = S0 + (buf & 3) * 12; buf += 1
            for half in range(2):
                for r in range(4):
                    e(f"v_accvgpr_read_b32 v{t+half*4+r}, a{Oacc(2*sg+half, qs)+r}")
            for k in range(4):
                e(f"v_pk_mul_f32 {vr(t+2*k,2)}, {vr(t+2*k,2)}, {vr(R+2*qs,2)}")
            for k in range(4):
                e(f"v_cvt_pk_bf16_f32 v{t+8+k}, v{t+2*k}, v{t+2*k+1}")
            e(f"buffer_store_dwordx4 {vr(t+8,4)}, v{L16}, s[{SRD_OF}:{SRD_OF+3}], s{S_T} offen offset:{sg*1024} {OST}")


def emit_final_fused(em, OST, xsel=()):
    e = em.e
    pr = 1
    def mf(qs):
        if PV2[0]:
            Pa, Pb = P0 + 2 * 16 + qs * 4, P0 + 3 * 16 + qs * 4
            r = [f"{MF} {ar(AL+qs*4,4)}, {ar(AONE,4)}, {vr(Pa,4)}, {ar(AL+qs*4,4)}", f"{MF} {ar(AL+qs*4,4)}, {ar(AONE,4)}, {vr(Pb,4)}, {ar(AL+qs*4,4)}"]
            for T in range(8):
                O = Oacc(T, qs)
                r.append(f"{MF} {ar(O,4)}, {ar(AV+T*4,4)}, {vr(Pa,4)}, {ar(O,4)}")
                r.append(f"{MF} {ar(O,4)}, {ar(AV2+T*4,4)}, {vr(Pb,4)}, {ar(O,4)}")
            return r
        r = [f"{MF} {ar(AL+qs*4,4)}, {ar(AONE,4)}, {vr(Preg(pr,qs),4)}, {ar(AL+qs*4,4)}"]
        for T in range(8):
            O = Oacc(T, qs)
            r.append(f"{MF} {ar(O,4)}, {ar(Vf(T),4)}, {vr(Preg(pr,qs),4)}, {ar(O,4)}")
        return r
    R = TMP
    def epi(qs):
        r = []
        r.append(f"v_accvgpr_read_b32 v{56+qs}, a{AL+qs*4}")
        r.append(f"s_add_u32 s{S_T}, s{S_OFB}, {qs*131072}")
        r.append(f"v_rcp_f32 v{R+2*qs}, v{56+qs}")
        r.append("s_nop 0")
        r.append(f"v_mov_b32 v{R+2*qs+1}, v{R+2*qs}")
        for sg in range(4):
            t = S0 + ((qs * 4 + sg) & 3) * 12
            for half in range(2):
                for rr in range(4): r.append(f"v_accvgpr_read_b32 v{t+half*4+rr}, a{Oacc(2*sg+half, qs)+rr}")
            for k in range(4): r.append(f"v_pk_mul_f32 {vr(t+2*k,2)}, {vr(t+2*k,2)}, {vr(R+2*qs,2)}")
            for k in range(4): r.append(f"v_cvt_pk_bf16_f32 v{t+8+k}, v{t+2*k}, v{t+2*k+1}")
            r.append(f"buffer_store_dwordx4 {vr(t+8,4)}, v{L16}, s[{SRD_OF}:{SRD_OF+3}], s{S_T} offen offset:{sg*1024} {OST}")
        return r
    for m in mf(0): em.mfma(m)
    for qs in range(4):
        if qs == 3:
            if xsel:
                import moe2
                e(f"s_cmp_lt_u32 s2, {moe2.NGD[0]}\ns_cbranch_scc0 K2_NOXSL")
                for it in xsel: e(it[1])
                em.label("K2_NOXSL")
        nxt = mf(qs + 1) if qs < 3 else []
        ep = epi(qs)
        head = nxt[:]
        pad = 0
        while head:
            em.mfma(head.pop(0)); pad += 1
        if pad < 9: e("s_nop 7\ns_nop 1")
        for t in ep: e(t)

def emit_check2(em):
    emit_check_and_fallback(em, lsrc=56)

def emit_check_and_fallback(em, lsrc=None):
    import k2new, moe2
    e = em.e
    FL = 49152
    T2 = 60
    if lsrc is None:
        e("s_nop 7")
        for qs in range(4): e(f"v_accvgpr_read_b32 v{56+qs}, a{AL+qs*4}")
        e("s_nop 0")
    e(f"v_max3_f32 v{T2}, v56, v57, v58\nv_max_f32 v{T2}, v{T2}, v59")
    e(f"v_add_f32 v{T2+1}, v56, v57\nv_add_f32 v{T2+1}, v{T2+1}, v58\nv_add_f32 v{T2+1}, v{T2+1}, v59")
    e(f"v_cmp_nge_f32 vcc, s{S_THR}, v{T2}")
    e(f"v_cmp_u_f32 s[48:49], v{T2+1}, v{T2+1}")
    e("s_or_b64 vcc, vcc, s[48:49]")
    e("s_cmp_lg_u64 vcc, 0\ns_cselect_b32 s48, 1, 0")
    e(f"v_mov_b32 v{T2}, s48\ns_lshl_b32 s49, s{S_WAVE}, 2\ns_add_u32 s49, s49, {FL}\nv_mov_b32 v{T2+1}, s49")
    e(f"ds_write_b32 v{T2+1}, v{T2}\ns_waitcnt lgkmcnt(0)\ns_barrier")
    e(f"v_mov_b32 v{T2+1}, {FL}\nds_read_b128 {vr(T2+4,4)}, v{T2+1}\ns_waitcnt lgkmcnt(0)")
    e(f"v_or_b32 v{T2+4}, v{T2+4}, v{T2+5}\nv_or_b32 v{T2+6}, v{T2+6}, v{T2+7}\nv_or_b32 v{T2+4}, v{T2+4}, v{T2+6}\ns_nop 0")
    e(f"v_readfirstlane_b32 s48, v{T2+4}")
    e(f"s_cmp_eq_u32 s48, 0\ns_cbranch_scc1 K2_NOFB\ns_cmp_eq_u32 s{S_PASS}, 0\ns_cbranch_scc0 K2_NOFB")
    e(f"s_mov_b32 s{S_PASS}, 1")
    e("s_waitcnt vmcnt(0)\ns_barrier")
    MX = NM
    for qs in range(4): e(f"v_mov_b32 v{MX+4*qs}, 0xff800000")
    e(f"s_mov_b32 s{S_KOFF}, 0\ns_mov_b32 s{S_LOOP}, 32")
    em.label("K2_FBLOOP")
    for kind, t in dma_k(0):
        e(t)
        if kind == "salu": e("s_nop 0")
    e("s_waitcnt vmcnt(0)\ns_barrier")
    for half in range(2):
        for i in range(8):
            kt, s = i >> 2, i & 3
            e(f"ds_read_b128 {ar(Kf(kt,s),4)}, v{KA+s} offset:{LDS_K + half*8192 + kt*4096}")
        e("s_waitcnt lgkmcnt(0)")
        for i in range(8):
            kt, s = i >> 2, i & 3
            for qs in range(4):
                D = Sreg(0, qs, kt)
                e(f"{MF} {vr(D,4)}, {ar(Kf(kt,s),4)}, {vr(Qf(qs,s),4)}, {'0' if s == 0 else vr(D,4)}")
        e("s_nop 7\ns_nop 3")
        for qs in range(4):
            b = S0 + qs * 8; m = MX + 4 * qs
            e(f"v_max3_f32 v{m}, v{m}, v{b}, v{b+1}\nv_max3_f32 v{m}, v{m}, v{b+2}, v{b+3}\nv_max3_f32 v{m}, v{m}, v{b+4}, v{b+5}\nv_max3_f32 v{m}, v{m}, v{b+6}, v{b+7}")
    e("s_barrier")
    e(f"s_add_u32 s{S_KOFF}, s{S_KOFF}, 16384\ns_sub_u32 s{S_LOOP}, s{S_LOOP}, 1\ns_cmp_lg_u32 s{S_LOOP}, 0\ns_cbranch_scc1 K2_FBLOOP")
    for qs in range(4):
        m = MX + 4 * qs
        emit_rowmax_across_groups(em, m, TMP)
        e(f"v_sub_f32 v{m}, 0, v{m}")
        for r in range(1, 4): e(f"v_mov_b32 v{m+r}, v{m}")
    for kind, T in (("K", 0), ("K", 1), ("V", 0), ("K", 2), ("V", 1)):
        sreg = S_KOFF if kind == "K" else S_VOFF
        e(f"s_mov_b32 s{sreg}, {T*16384}")
        for k2_, t in (dma_k(T) if kind == "K" else dma_v(T)):
            e(t)
            if k2_ == "salu": e("s_nop 0")
    k2new.emit_wof_addr_fb(em)
    e("s_waitcnt vmcnt(0)")
    e("s_branch K2_PRE")
    em.label("K2_NOFB")
    em.ds_done = em.ds - 1

NST = [0]
DBGOUT = [False]
CPF2 = [True]
TOUCH = [True]
FINFUSE = [True]
def stamp(em, prof=True, k=None):
    if not prof: return
    if k is None:
        k = NST[0]; NST[0] += 1
    em.e(f"s_memrealtime s[98:99]\ns_waitcnt lgkmcnt(0)\nv_writelane_b32 v2, s98, {k}")
    em.ds_done = em.ds - 1
def stamp_out(em, prof):
    if not prof: return
    e = em.e
    e(f"s_lshl_b32 s{S_T}, s2, 2\ns_add_u32 s{S_T}, s{S_T}, s{S_WAVE}\ns_lshl_b32 s{S_T}, s{S_T}, 8")
    e(f"s_add_u32 s{S_T}, s{S_T}, {hex(WS_PROF)}")
    e("v_lshlrev_b32 v5, 2, v1")
    e(f"buffer_store_dword v2, v5, s[{SRD_WS}:{SRD_WS+3}], s{S_T} offen")

def emit_iter(em, kind, order, extras=None, prehook=None):
    for b in range(4):
        for half in range(2):
            u = 2 * b + half
            kw = {}
            pre = None; dma = []; post = ()
            if half == 0:
                if kind == "first":
                    if b >= 2:
                        n = em.vm - 1 - TAGS[("body", b - 2)]
                        pre = f"s_waitcnt vmcnt({n})" + (" lgkmcnt(0)" if b == 3 else "") + "\ns_barrier"
                    elif b == 1:
                        import k2new
                        pre = (f"s_waitcnt vmcnt({em.vm})\n" if k2new.B1WAIT[0] else "") + "s_barrier"
                elif kind == "last":
                    n = em.vm - 1 - TAGS[("body", b - 2)]
                    pre = f"s_waitcnt vmcnt({min(n, 63)})\ns_barrier"
                else:
                    pre = "s_waitcnt vmcnt(8)\ns_barrier"
                do = (kind != "last") or b == 0
                if do: dma = [("salu", f"s_add_u32 s{S_KOFF}, s{S_KOFF}, 16384")] + dma_k((b + 3) & 3)
            else:
                do = (kind != "last") or b <= 1
                if do:
                    dma = [("salu", f"s_add_u32 s{S_VOFF}, s{S_VOFF}, 16384")] + dma_v((b + 2) & 3)
                    dma[-1] = (dma[-1][0], dma[-1][1], {"tag": ("body", b)})
            xds = []
            if extras is not None:
                xd, xds = extras(u)
                dma = xd + dma
            if PV2[0]:
                if kind == "first" and u <= 1: kw["do_pv"] = False
                if kind == "first" and u in (2, 3): kw["first_pv"] = True
            else:
                if kind == "first" and u == 0: kw["do_pv"] = False
                if kind == "first" and u == 1: kw["first_pv"] = True
            if kind == "last" and u >= 6: kw["ld_k"] = False
            if kind == "last" and u == 7: kw["do_qk"] = False
            if kind == "mid" and u == 7:
                post = [("salu", f"s_sub_u32 s{S_LOOP}, s{S_LOOP}, 1"), ("salu", f"s_cmp_lg_u32 s{S_LOOP}, 0")]
            em.c(f"--- {kind} step u={u}")
            if pre:
                em.e(pre)
                if "lgkmcnt(0)" in pre: em.ds_done = em.ds - 1
            if prehook is not None and half == 0: prehook(em, b)
            emit_step(em, u, dma=dma, order=order, pre=None, post=post, xds=xds, **kw)

def k2(name="k2_attn_kernel", order="C", prof=False, ost="", wof=True, moe=True, fused=True):
    import k2new, moe2, k3f
    NST[0] = 0
    moe2.FUSED[0] = fused
    if PV2[0]: moe2.set_pv2()
    import moe3 as _m3
    _m3.PROF[0] = prof
    k2new.KNAME[0] = name
    em = Em()
    kernel_head(em, name)
    if k2new.FRONT[0] == 4:
        import k2f4
        k2new.EARLY[0] = False
        moe2.PFV, moe2.PFD = 184, 180
        k2f4.emit_front4(em, prof)
        k2f4.emit_qproj4(em)
    else:
        k2new.B1WAIT[0] = False
        k2new.emit_front(em, prof, moe)
        stamp(em, prof)
        k2new.emit_qproj2(em)
    GDE = k2new.GDE[0] and k2new.FRONT[0] == 2 and fused
    if GDE:
        import k3f, moe3
        e = em.e
        stamp(em, prof)
        emit_pre(em)
        stamp(em, prof)
        em.e(f"s_mov_b32 s{S_KOFF}, {2*16384}\ns_mov_b32 s{S_VOFF}, {1*16384}")
        em.vm = 0
        emit_iter(em, "first", order, extras=lambda u: (([moe2.flag_item()] if u == 5 else []), []))
        moe2.after_first(em, gather=False)
        moe3.after_first(em)
        em.e(f"s_mov_b32 s{S_LOOP}, 6")
        em.e(".p2align 6")
        em.label("K2_LOOP")
        em.e(f"s_cmp_eq_u32 s{S_LOOP}, 5\ns_cbranch_scc0 K2_NOWOFC\ns_cmp_eq_u32 s{S_PASS}, 0\ns_cbranch_scc0 K2_NOWOFC")
        k3f.atomic_inc(em, k3f.C_WOF, "K2_NOWOFC", vt=TMP, st=S_T)
        em.e("s_nop 1")
        moe3.loop_head(em)
        em.e(f"s_cmp_eq_u32 s{S_LOOP}, 1\ns_cbranch_scc0 K2_NOXF")
        em.e(f"v_mov_b32 v{moe2.IDXV}, 0\ns_mov_b32 s{S_T}, {hex(k3f.C_WOF)}\nbuffer_load_dword v{moe2.XSB}, v{moe2.IDXV}, s[{SRD_WS}:{SRD_WS+3}], s{S_T} offen sc0 sc1")
        if k2new.CPF[0] and CPF2[0]:
            code_prefetch(em, "K2_LAST", "K2_CODE_END", 2, S_WAVE, 1, (234 if PV2[0] else 108), (238 if PV2[0] else 105), 92, "k2b", forward=True); em.vm -= 1
        em.label("K2_NOXF")
        em.e("s_nop 3")
        em.e("s_waitcnt lgkmcnt(8)"); em.ds_done = em.ds - 9
        emit_iter(em, "mid", order)
        em.e("s_cbranch_scc1 K2_LOOP")
        em.vm = 16; TAGS[("body", -2)] = 7; TAGS[("body", -1)] = 15
        em.label("K2_LAST")
        e(f"v_readfirstlane_b32 s{S_T}, v{moe2.XSB}\ns_cmp_ge_u32 s{S_T}, 256\ns_cbranch_scc1 K2_WOFOK")
        em.label("K2_WOFSPIN")
        e(f"s_sleep 4\ns_mov_b32 s{S_T}, {hex(k3f.C_WOF)}\nbuffer_load_dword v{moe2.XSB}, v{moe2.IDXV}, s[{SRD_WS}:{SRD_WS+3}], s{S_T} offen sc0 sc1\ns_waitcnt vmcnt(0)")
        e(f"v_readfirstlane_b32 s{S_T}, v{moe2.XSB}\ns_cmp_ge_u32 s{S_T}, 256\ns_cbranch_scc0 K2_WOFSPIN")
        em.label("K2_WOFOK")
        emit_iter(em, "last", order)
        stamp(em, prof)
        emit_final_pv(em)
        emit_check_and_fallback(em)
        k3f.early(em)
        emit_epilogue(em, "sc0 sc1", pv=False)
        stamp(em, prof)
        k3f.setup(em)
        e("s_barrier")
        em.vm = 0
        for st in range(3): k3f.emit_items(em, k3f.a_dma(st))
        e("s_waitcnt vmcnt(27)")
        k3f.oflag_set(em)
        e(f"buffer_load_dword v{k3f.OFV8+1}, v{k3f.OFV8}, s[{SRD_WS}:{SRD_WS+3}], s{k3f.P_OD} offen sc0 sc1\ns_waitcnt vmcnt(0)")
        k3f.oflag_need(em, 1, "K2_OF01")
        for st in range(2): k3f.emit_items(em, k3f.b_ld(st))
        k3f.YMODE[0] = "none"; k3f.YTGT[0] = 144
        k3f.main(em, lambda em_: stamp(em_, prof))
    else:
        moe2.emit_front_topk(em)
        moe2.setup_early(em)
        stamp(em, prof)
        emit_pre(em)
        stamp(em, prof)
        em.e("s_mov_b32 s81, 0x07060302\ns_mov_b32 s82, 0x3f803f80")
        if SUMMODE[0] == "dot2":
            for k in range(4): em.e(f"v_mov_b32 v{112+k}, 0")
        em.e(f"s_mov_b32 s{S_KOFF}, {2*16384}\ns_mov_b32 s{S_VOFF}, {1*16384}")
        em.vm = 0
        def ex_first(u):
            d, x = k2new.wof_extras(u)
            d2, x2 = moe2.extras_first(u)
            return d + d2, x + x2
        emit_iter(em, "first", order, extras=ex_first)
        moe2.after_first(em, gather=(k2new.FRONT[0] != 4))
        if fused and TOUCH[0]:
            e = em.e
            e(f"v_mov_b32 v104, 0")
            e(f"buffer_load_dword v105, v104, s[{SRD_OF}:{SRD_OF+3}], s{S_OFB} offen")
            e(f"s_bfe_u32 s{S_T}, s2, 0x20001\ns_lshl_b32 s{S_T}, s{S_T}, 2\ns_lshr_b32 s{S_T2}, s2, 6\ns_add_u32 s{S_T}, s{S_T}, s{S_T2}")
            e(f"s_lshl_b32 s{S_T2}, s{S_T}, 20\nbuffer_load_dword v106, v104, s[{SRD_OF}:{SRD_OF+3}], s{S_T2} offen")
            e(f"s_lshl_b32 s{S_T}, s{S_T}, 2\ns_bfe_u32 s{S_T2}, s2, 0x20004\ns_add_u32 s{S_T}, s{S_T}, s{S_T2}\ns_mul_i32 s{S_T}, s{S_T}, {64*5120}\ns_add_u32 s{S_T}, s{S_T}, {hex(k3f.WS_PART2)}")
            e(f"buffer_load_dword v107, v104, s[{SRD_WS}:{SRD_WS+3}], s{S_T} offen")
            e(f"s_load_dwordx2 s[92:93], s[0:1], {KA_OUT}\ns_waitcnt lgkmcnt(0)")
            em.ds_done = em.ds - 1
            e(f"s_bfe_u32 s{S_T}, s2, 0x20001\ns_mul_i32 s{S_T}, s{S_T}, {512*1152}\nv_mov_b32 v108, s{S_T}")
            e("global_load_dword v109, v108, s[92:93]")
        em.e(f"s_mov_b32 s{S_LOOP}, 6")
        em.e(".p2align 6")
        em.label("K2_LOOP")
        if fused:
            em.e(f"s_cmp_eq_u32 s{S_LOOP}, 5\ns_cbranch_scc0 K2_NOWOFC\ns_cmp_eq_u32 s{S_PASS}, 0\ns_cbranch_scc0 K2_NOWOFC")
            k3f.atomic_inc(em, k3f.C_WOF, "K2_NOWOFC", vt=TMP, st=S_T)
            em.e("s_nop 1")
        if k2new.FRONT[0] == 4:
            moe2.loop_head_prefetch(em)
            em.e(f"s_cmp_eq_u32 s{S_LOOP}, 3\ns_cbranch_scc0 K2_NOXSG\ns_cmp_eq_u32 s2, {moe2.XSWG}\ns_cbranch_scc0 K2_NOXSG")
            moe2.xs_gather(em, wait_wof=True)
            em.label("K2_NOXSG")
        em.e(f"s_cmp_eq_u32 s{S_LOOP}, 1\ns_cbranch_scc0 K2_NOXF")
        moe2.loop_head_flag(em)
        if k2new.CPF[0] and CPF2[0]:
            code_prefetch(em, "K2_LAST", "K2_CODE_END", 2, S_WAVE, 1, (234 if PV2[0] else 108), (238 if PV2[0] else 105), 92, "k2b", forward=True); em.vm -= 1
        em.label("K2_NOXF")
        em.e("s_waitcnt lgkmcnt(8)"); em.ds_done = em.ds - 9
        emit_iter(em, "mid", order)
        em.e("s_cbranch_scc1 K2_LOOP")
        em.vm = 16; TAGS[("body", -2)] = 7; TAGS[("body", -1)] = 15
        em.label("K2_LAST")
        moe2.setup_before_last(em)
        emit_iter(em, "last", order, extras=moe2.extras_last)
        stamp(em, prof)
        e = em.e
        if not fused:
            emit_epilogue(em, ost)
            moe2.emit_tail(em)
        else:
            if FINFUSE[0]:
                emit_final_fused(em, k3f.SST[0], xsel=([moe2.xsel_item(sg) for sg in range(15, 18)] if PV2[0] else ()))
                emit_check2(em)
                k3f.early(em)
            else:
                emit_final_pv(em)
                emit_check_and_fallback(em)
                k3f.early(em)
                emit_epilogue(em, "sc0 sc1", pv=False)
            stamp(em, prof)
            e(f"s_cmp_lt_u32 s2, {moe2.NGD[0]}\ns_cbranch_scc0 K2_NOGD")
            e(f"s_waitcnt vmcnt({19 if PV2[0] else 16})\ns_barrier")
            moe2.emit_tail(em, fused=True, mid=lambda: (e("s_waitcnt vmcnt(0)"), k3f.oflag_set(em, 14)))
            k3f.setup(em)
            e("s_waitcnt vmcnt(0)\ns_barrier")
            k3f.atomic_inc(em, k3f.C_Y, "K2_YC1")
            em.vm = 0
            e(f"buffer_load_dword v{k3f.OFV8+1}, v{k3f.OFV8}, s[{SRD_WS}:{SRD_WS+3}], s{k3f.P_OD} offen sc0 sc1")
            for st in range(3): k3f.emit_items(em, k3f.a_dma(st))
            e("s_waitcnt vmcnt(27)")
            e("s_branch K2_P2A")
            em.label("K2_NOGD")
            k3f.setup(em)
            e("s_barrier")
            for st in range(3): k3f.emit_items(em, k3f.a_dma(st))
            e("s_waitcnt vmcnt(27)")
            k3f.oflag_set(em)
            e(f"buffer_load_dword v{k3f.OFV8+1}, v{k3f.OFV8}, s[{SRD_WS}:{SRD_WS+3}], s{k3f.P_OD} offen sc0 sc1\ns_waitcnt vmcnt(0)")
            em.label("K2_P2A")
            k3f.oflag_need(em, 1, "K2_OF01")
            for st in range(2): k3f.emit_items(em, k3f.b_ld(st))
            em.label("K2_P2")
            k3f.main(em, lambda em_: stamp(em_, prof))
    if prof:
        em.e("s_waitcnt vmcnt(0)")
        stamp(em, prof)
        stamp_out(em, prof)
        if DBGOUT[0]:
            e = em.e
            for wg, words in ((0, (3, 4, 5, 6, 7, 9)), (133, (10, 11, 12, 13, 14, 15))):
                lab = f"K2_DBG{wg}"
                e(f"s_cmp_eq_u32 s2, {wg}\ns_cbranch_scc0 {lab}\ns_cmp_eq_u32 s{S_WAVE}, 0\ns_cbranch_scc0 {lab}")
                e("v_readlane_b32 s49, v2, 0\ns_nop 3")
                for k, w in zip((2, 3, 5, 7, 8, 10), words):
                    e(f"v_readlane_b32 s48, v2, {k}\ns_nop 3\ns_sub_u32 s48, s48, s49\nv_mov_b32 v6, s48\nv_mov_b32 v5, 0\ns_mov_b64 exec, 1")
                    e(f"buffer_store_dword v6, v5, s[68:71], 0 offen offset:{4*w}")
                    e("s_mov_b64 exec, -1")
                em.label(lab)
    print("k2 min DS distance:", em.minN, "stamps", NST[0])
    em.label("K2_END")
    em.e("s_endpgm")
    em.label("K2_CODE_END")
    L2 = []
    seen_head = False
    for line in em.L:
        L2.append(line)
        if line.startswith("s_cbranch_scc1 K2_END") and not seen_head:
            L2.append("s_mov_b32 s100, 0"); seen_head = True
        if line.startswith("s_sleep"):
            L2 += ["s_add_u32 s100, s100, 1", "s_bitcmp1_b32 s100, 19", "s_cbranch_scc1 K2_END"]
    em.L = L2
    return em.text(), kernel_desc(name, 512, 102, 256), f"; @launch kernel={name} grid=(256,1,1) block=(256,1,1) lds={LDS_TOTAL}"
```

```python
from asmlib import *
import k2 as K
from k2 import *
import k2new as N
from k2new import SRD_X, SRD_WR, SRD_WO, SRD_DBG, LN_RS, WOF_LDS, dpp_reduce32, bf16r, emit_wof_addr, CSACC, STATV, CNTV
XS = [0, 65536]
XH = 32768
WQR = 131072
CSBUF = 131072
LN_ST = 114688
XD = 104
XD = 200
XHV = 204
XHA = 205
XNK = 152
LNA = 161
BR = 0
T4 = {}

def emit_front4(em, prof):
    e = em.e
    e("s_cmp_ge_u32 s2, 256\ns_cbranch_scc1 K2_END")
    e(f"s_load_dwordx2 s[72:73], s[0:1], {KA_X}")
    e(f"s_load_dwordx2 s[74:75], s[0:1], {KA_WR}")
    e(f"s_load_dwordx2 s[52:53], s[0:1], {KA_WQ}")
    e(f"s_load_dwordx2 s[54:55], s[0:1], {KA_WS}")
    e(f"s_load_dwordx4 s[4:7], s[0:1], {KA_K}")
    e(f"s_load_dwordx2 s[76:77], s[0:1], {KA_WO}")
    e(f"s_load_dwordx2 s[78:79], s[0:1], {KA_DBG}")
    e("s_lshr_b32 s28, s2, 3")
    e(f"s_and_b32 s3, s2, 1\ns_lshl_b32 s3, s3, 4\ns_lshr_b32 s29, s28, 1\ns_add_u32 s{S_HEAD}, s3, s29")
    e(f"s_and_b32 s3, s2, 6\ns_and_b32 s29, s28, 1\ns_add_u32 s{S_QB}, s3, s29")
    e(f"s_lshl_b32 s3, s{S_QB}, 8\ns_lshl_b32 s28, s{S_HEAD}, 3\ns_add_u32 s3, s3, s28")
    e("v_and_b32 v1, 63, v0\nv_lshrrev_b32 v2, 6, v0")
    e("v_and_b32 v3, 15, v1\nv_lshrrev_b32 v4, 4, v1")
    e(f"v_readfirstlane_b32 s{S_WAVE}, v2")
    for k in range(4):
        e(f"v_add_u32 v9, {4*k}, v4\nv_xor_b32 v10, v9, v3\nv_lshlrev_b32 v10, 4, v10\nv_mul_u32_u24 v9, 0x480, v9\nv_add_u32 v10, v10, v9")
        e(f"v_subrev_u32 v{XD+k}, {1024*k}, v10" if k else f"v_mov_b32 v{XD}, v10")
    e(f"s_lshl_b32 s{S_T}, s{S_QB}, 8\ns_lshl_b32 s{S_T2}, s{S_WAVE}, 6\ns_add_u32 s{S_T}, s{S_T}, s{S_T2}\ns_mul_i32 s97, s{S_T}, 1152")
    e(f"s_lshl_b32 s96, s{S_WAVE}, 14")
    e(f"s_and_b32 s28, s{S_WAVE}, 1\ns_lshl_b32 s28, s28, 2\nv_or_b32 v9, s28, v4\nv_lshlrev_b32 v9, 1, v9\nv_xor_b32 v9, v9, v3\nv_lshlrev_b32 v9, 4, v9")
    e(f"s_lshl_b32 s{S_T}, s{S_WAVE}, 16")
    e(f"v_lshl_add_u32 v9, v4, 13, v9\nv_add_u32 v{DW}, s{S_T}, v9\nv_add_u32 v{DW+1}, {4*8192-1024}, v{DW}")
    e(f"s_lshl_b32 s{S_WQOFF}, s{S_HEAD}, 8")
    e(f"s_lshl_b32 s{S_MX}, s{S_WAVE}, 11\ns_add_u32 s{S_MX}, s{S_MX}, {WQR}")
    e("v_lshrrev_b32 v5, 5, v0\nv_add_u32 v5, s3, v5\nv_and_b32 v6, 31, v0")
    e("v_mul_u32_u24 v7, 0x480, v5\nv_lshl_add_u32 v7, v6, 2, v7\nv_lshlrev_b32 v8, 2, v6")
    e("s_waitcnt lgkmcnt(0)")
    srd(em, SRD_X, 72, 73, 2048 * 1152)
    srd(em, SRD_WQ, 52, 53, 576 * 8192)
    tags = T4; tags.clear()
    def wq_dma(sg):
        e(f"s_add_u32 m0, s{S_MX}, {(sg&3)*8192}\ns_nop 0")
        for i in range(2):
            tags[("wq", sg)] = em.vmem(f"buffer_load_dwordx4 v{DW+i}, s[{SRD_WQ}:{SRD_WQ+3}], s{S_WQOFF} offen offset:{i*1024} lds")
        e(f"s_add_u32 s{S_WQOFF}, s{S_WQOFF}, {32*8192}")
    def x_dma(c):
        for gi in range(4):
            e(f"s_add_u32 m0, s96, {XS[c&1] + gi*4096}\ns_add_u32 s{S_T}, s97, {gi*18432 + c*256}")
            for k in range(4):
                tags[("x", c)] = em.vmem(f"buffer_load_dwordx4 v{XD+k}, s[{SRD_X}:{SRD_X+3}], s{S_T} offen offset:{k*1024} lds")
    wq_dma(0); x_dma(0); wq_dma(1)
    X, W, F = 18, 28, 40
    srd(em, SRD_WR, 74, 75, 1152)
    for i in range(9): em.vmem(f"buffer_load_dword v{X+i}, v7, s[{SRD_X}:{SRD_X+3}], 0 offen offset:{i*128}")
    xtag = em.vm - 1
    for i in range(9): em.vmem(f"buffer_load_dword v{W+i}, v8, s[{SRD_WR}:{SRD_WR+3}], 0 offen offset:{i*128}")
    wtag = em.vm - 1
    if N.CPF[0]: code_prefetch(em, N.KNAME[0], "K2_CODE_END", 2, S_WAVE, 1, 100, 99, 92, "k2")
    wq_dma(2); wq_dma(3); x_dma(1)
    for k in range(4): e(f"s_mov_b32 s{N.SRD_X2+k}, s{SRD_X+k}")
    e(f"s_mov_b32 s{N.SRD_X2+3}, 0x00020000")
    K.stamp(em, prof)
    e(f"s_lshl_b32 s{S_W4K}, s{S_WAVE}, 12")
    e(f"v_lshlrev_b32 v{L16}, 4, v1")
    for u in range(4):
        e(f"s_add_u32 s28, s{S_WAVE}, {u}\ns_and_b32 s28, s28, 3\ns_lshl_b32 s28, s28, 2")
        e(f"v_add_u32 v9, s28, v4\nv_xor_b32 v9, v9, v3\nv_lshlrev_b32 v9, 4, v9\nv_lshl_add_u32 v{KA+u}, v3, 8, v9")
    for kk in range(4):
        e(f"v_add_u32 v9, {4*kk}, v4\nv_xor_b32 v9, v9, v3\nv_lshlrev_b32 v9, 4, v9\nv_lshl_add_u32 v9, v3, 8, v9\nv_add_u32 v{XB+kk}, s96, v9")
    e(f"v_lshrrev_b32 v9, 3, v1\nv_and_b32 v10, 7, v1\nv_xor_b32 v10, v10, v9\nv_lshlrev_b32 v10, 4, v10\nv_mul_u32_u24 v9, 0x480, v9\nv_add_u32 v{XHV}, v9, v10")
    e(f"s_lshl_b32 s28, s{S_WAVE}, 13\ns_add_u32 s28, s28, {XH}\nv_and_b32 v10, 7, v3")
    for p in range(2):
        e(f"v_add_u32 v9, {4*p}, v4\nv_xor_b32 v9, v9, v10\nv_lshlrev_b32 v9, 4, v9\nv_lshl_add_u32 v9, v3, 7, v9\nv_add_u32 v{XHA+p}, s28, v9")
    e("v_bfe_u32 v9, v1, 2, 2\nv_and_b32 v10, 3, v1\nv_lshl_add_u32 v11, v4, 2, v9")
    e("v_and_b32 v12, 7, v11")
    e(f"v_lshlrev_b32 v13, 8, v11\nv_lshl_add_u32 v13, v10, 3, v13\nv_add_u32 v13, {hex(LDS_V)}, v13")
    for T in range(8):
        e(f"v_xor_b32 v14, {T}, v12\nv_lshl_add_u32 v{VA+T}, v14, 5, v13")
    e("v_and_b32 v14, 1, v4\nv_lshl_add_u32 v14, v14, 2, v9")
    e("v_lshrrev_b32 v15, 1, v10\nv_xor_b32 v14, v14, v15")
    e(f"v_lshl_add_u32 v15, v4, 3, v9\nv_lshlrev_b32 v15, 8, v15\nv_and_b32 v16, 1, v10\nv_lshl_add_u32 v15, v16, 4, v15\nv_add_u32 v15, {WQR}, v15")
    for u in range(4):
        e(f"s_add_u32 s28, s{S_WAVE}, {u}\ns_and_b32 s28, s28, 3\ns_lshl_b32 s28, s28, 1")
        e(f"v_xor_b32 v16, s28, v14\nv_lshl_add_u32 v{WQA+u}, v16, 5, v15")
    e(f"v_mul_u32_u24 v16, 576, v11\nv_lshl_add_u32 v16, v10, 3, v16\nv_add_u32 v16, {hex(WOF_LDS)}, v16")
    e(f"s_lshl_b32 s{S_T}, s{S_WAVE}, 5\nv_add_u32 v{TMP+8}, s{S_T}, v16")
    for i in range(4):
        e(f"v_add_u32 v9, {4*i}, v4\nv_xor_b32 v9, v9, v3\nv_lshlrev_b32 v9, 4, v9\nv_lshl_add_u32 v9, v4, 8, v9\nv_add_u32 v{DK+i}, s{S_W4K}, v9")
    for i in range(2):
        e(f"v_add_u32 v9, {4*i}, v4\nv_lshlrev_b32 v9, 1, v9\nv_xor_b32 v9, v9, v3\nv_lshlrev_b32 v9, 4, v9\nv_lshl_add_u32 v9, v4, 8, v9\nv_add_u32 v{DV+i}, s{S_W4K}, v9")
    e(f"s_lshl_b32 s{S_T}, s{S_QB}, 4\ns_lshl_b32 s{S_T2}, s{S_WAVE}, 2\ns_add_u32 s{S_T}, s{S_T}, s{S_T2}")
    e(f"s_lshl_b32 s{S_OFB}, s{S_T}, 17\ns_lshl_b32 s{S_T2}, s{S_HEAD}, 12\ns_add_u32 s{S_OFB}, s{S_OFB}, s{S_T2}")
    for k in range(5): e(f"s_mov_b32 s{S_X4+k}, {k*4096}")
    e(f"s_mov_b32 s{S_THR}, 0x5f800000\ns_mov_b32 s{S_PASS}, 0")
    for i in range(4): e(f"v_mov_b32 v{TMP}, 0x3f803f80\nv_accvgpr_write_b32 a{AONE+i}, v{TMP}")
    e(f"s_lshr_b32 s{S_T}, s{S_HEAD}, 1\ns_lshl_b32 s{S_T}, s{S_T}, 19")
    e(f"s_add_u32 s4, s4, s{S_T}\ns_addc_u32 s5, s5, 0\ns_add_u32 s6, s6, s{S_T}\ns_addc_u32 s7, s7, 0")
    srd(em, SRD_K, 4, 5, 524288)
    srd(em, SRD_V, 6, 7, 524288)
    srd(em, SRD_WS, 54, 55, WS_SIZE)
    e(f"s_add_u32 s54, s54, {hex(WS_OF)}\ns_addc_u32 s55, s55, 0")
    srd(em, SRD_OF, 54, 55, 2048 * 4096 * 2)
    srd(em, SRD_WO, 76, 77, 4096 * 1152)
    srd(em, SRD_DBG, 78, 79, 256)
    e(f"s_load_dwordx2 s[80:81], s[0:1], {KA_WG}\ns_load_dwordx2 s[82:83], s[0:1], {KA_WU}\ns_load_dwordx2 s[84:85], s[0:1], {KA_WD}")
    c = f2u(128 ** -0.5 * 1.4426950408889634)
    e(f"s_mov_b32 s72, 0x3ae38e39\ns_mov_b32 s73, 0x3727c5ac\ns_mov_b32 s74, 0xffff0000\ns_mov_b32 s75, {hex(c)}")
    em.wait_vm(xtag)
    for i in range(9):
        e(f"v_lshlrev_b32 v{F+2*i}, 16, v{X+i}\nv_and_b32 v{F+2*i+1}, s74, v{X+i}")
    A0, A1, A2, A3 = 60, 61, 62, 63
    e(f"v_add_f32 v{A0}, v{F}, v{F+1}\nv_add_f32 v{A1}, v{F+2}, v{F+3}")
    for i in range(4, 18, 2): e(f"v_add_f32 v{A0}, v{A0}, v{F+i}\nv_add_f32 v{A1}, v{A1}, v{F+i+1}")
    e(f"v_add_f32 v{A0}, v{A0}, v{A1}")
    dpp_reduce32(em, A0, A1)
    e(f"v_mul_f32 v{A0}, s72, v{A0}")
    e(f"v_sub_f32 v{A2}, v{F}, v{A0}\nv_mul_f32 v{A1}, v{A2}, v{A2}\nv_sub_f32 v{A2}, v{F+1}, v{A0}\nv_mul_f32 v{A3}, v{A2}, v{A2}")
    for i in range(2, 18, 2):
        e(f"v_sub_f32 v{A2}, v{F+i}, v{A0}\nv_sub_f32 v64, v{F+i+1}, v{A0}\nv_fmac_f32 v{A1}, v{A2}, v{A2}\nv_fmac_f32 v{A3}, v64, v64")
    e(f"v_add_f32 v{A1}, v{A1}, v{A3}")
    dpp_reduce32(em, A1, A2)
    e(f"v_mul_f32 v{A1}, s72, v{A1}")
    bf16r(em, A0, A0); bf16r(em, A1, A1)
    e(f"v_add_f32 v{A1}, s73, v{A1}")
    bf16r(em, A1, A1)
    e(f"v_sqrt_f32 v{A1}, v{A1}\ns_nop 0")
    bf16r(em, A1, A1)
    e(f"v_rcp_f32 v{A2}, v{A1}\ns_nop 0")
    e(f"v_mul_f32 v70, s75, v{A2}\nv_mul_f32 v71, v70, v{A0}\nv_sub_f32 v71, 0, v71")
    e(f"v_mov_b32 v{A3}, 0")
    e(f"v_lshrrev_b32 v65, 5, v0\nv_mul_u32_u24 v65, {LN_RS}, v65\nv_lshl_add_u32 v65, v6, 2, v65\nv_add_u32 v{LNA}, {hex(LN_ST)}, v65")
    em.wait_vm(wtag)
    for i in range(9):
        a, b = F + 2 * i, F + 2 * i + 1
        e(f"v_sub_f32 v{a}, v{a}, v{A0}\nv_sub_f32 v{b}, v{b}, v{A0}")
        e(f"v_cvt_pk_bf16_f32 v66, v{a}, v{b}")
        e(f"v_lshlrev_b32 v{a}, 16, v66\nv_and_b32 v{b}, s74, v66")
        e(f"v_mul_f32 v67, v{a}, v{A2}\nv_mul_f32 v68, v{b}, v{A2}")
        e(f"v_fma_f32 v{a}, -v67, v{A1}, v{a}\nv_fma_f32 v{b}, -v68, v{A1}, v{b}")
        e(f"v_fmac_f32 v67, v{a}, v{A2}\nv_fmac_f32 v68, v{b}, v{A2}")
        e(f"v_cvt_pk_bf16_f32 v{XNK+i}, v67, v68")
        e(f"v_dot2_f32_bf16 v{A3}, v{XNK+i}, v{W+i}, v{A3}")
    e("s_nop 2")
    dpp_reduce32(em, A3, A2)
    bf16r(em, A3, A3)
    e(f"v_lshlrev_b32 v66, 2, v5\nv_add_u32 v66, {hex(WS_R)}, v66\nv_lshlrev_b32 v67, 3, v5\nv_add_u32 v67, {hex(WS_STAT)}, v67")
    e("v_cmp_eq_u32 vcc, 0, v6\ns_and_saveexec_b64 s[76:77], vcc")
    em.vmem(f"buffer_store_dword v{A3}, v66, s[{SRD_WS}:{SRD_WS+3}], 0 offen sc0 sc1")
    em.vmem(f"buffer_store_dwordx2 v[70:71], v67, s[{SRD_WS}:{SRD_WS+3}], 0 offen sc0 sc1")
    e("s_mov_b64 exec, s[76:77]")
    e(f"s_cmp_eq_u32 s2, 0\ns_lshl_b32 s28, s{S_WAVE}, 10\ns_add_u32 s28, s28, {hex(WS_FLAGS)}" .replace("s_cmp_eq_u32 s2, 0\n", ""))
    e("s_cmp_eq_u32 s2, 0\ns_cselect_b32 s28, s28, 0x7ff00000")
    e("v_mov_b32 v84, 0\nv_mov_b32 v85, 0\nv_mov_b32 v86, 0\nv_mov_b32 v87, 0")
    for zk in range(3):
        tags["lnst"] = em.vmem(f"buffer_store_dwordx4 v[84:87], v{L16}, s[{SRD_WS}:{SRD_WS+3}], s28 offen sc0 sc1")
        e("s_add_u32 s28, s28, 4096")
    e("s_waitcnt lgkmcnt(0)")
    import moe2
    moe2.setup_front(em)
    em.ds_done = em.ds - 1
    K.stamp(em, prof); K.stamp(em, prof)

def emit_qproj4(em):
    import moe2
    e = em.e
    NK = 18
    tags = T4
    def wq_items(sg):
        r = [("salu", f"s_add_u32 m0, s{S_MX}, {(sg&3)*8192}")]
        r += [("vmem", f"buffer_load_dwordx4 v{DW+i}, s[{SRD_WQ}:{SRD_WQ+3}], s{S_WQOFF} offen offset:{i*1024} lds", ("wq", sg)) for i in range(2)]
        r += [("salu", f"s_add_u32 s{S_WQOFF}, s{S_WQOFF}, {32*8192}")]
        return r
    def x_items(c, g0, g1):
        r = []
        for gi in range(g0, g1):
            r.append(("salu", f"s_add_u32 m0, s96, {XS[c&1] + gi*4096}\ns_add_u32 s{S_T}, s97, {gi*18432 + c*256}"))
            for k in range(4):
                r.append(("vmem", f"buffer_load_dwordx4 v{XD+k}, s[{N.SRD_X2}:{N.SRD_X2+3}], s{S_T} offen offset:{k*1024} lds", ("x", c)))
        return r
    def xh_items():
        r = []
        for i in range(8):
            r.append(("vmem", f"s_lshl_b32 s{S_T2}, s{S_WAVE}, 13\ns_add_u32 m0, s{S_T2}, {XH + i*1024}\ns_add_u32 s{S_T}, s97, {i*8*1152 + 1024}\nbuffer_load_dwordx4 v{XHV}, s[{N.SRD_X2}:{N.SRD_X2+3}], s{S_T} offen lds", ("x", 4)))
        return r
    def kv_init(kind, T):
        sreg = S_KOFF if kind == "K" else S_VOFF
        r = [("salu", f"s_mov_b32 s{sreg}, {T*16384}")]
        r += [(k, t) for k, t in (dma_k(T) if kind == "K" else dma_v(T))]
        return r
    def issue(items):
        prev = None
        for it in items:
            if it[0] == "vmem":
                if prev is not None and "m0" in prev[1] and prev[0] == "salu" and prev[1].strip().endswith(tuple(str(d) for d in range(10))) and prev[1].count("\n") == 0: e("s_nop 0")
                idx = em.vmem(it[1])
                if len(it) > 2: tags[it[2]] = idx
            else: e(it[1])
            prev = it
    def aset(sg): return AK + (sg & 1) * 32
    def a_ld(sg):
        r = []
        for t in range(8):
            u, half = t >> 1, t & 1
            for j in range(2):
                r.append(f"ds_read_b64_tr_b16 {ar(aset(sg)+t*4+2*j,2)}, v{WQA+u} offset:{(sg&3)*8192 + j*1024 + 8*half}")
        return r
    def b_ld(sg):
        c, kk = sg >> 2, sg & 3
        if c < 4: return [f"ds_read_b128 {ar(BR+((sg&1)*4+qs)*4,4)}, v{XB+kk} offset:{qs*4096}" for qs in range(4)]
        return [f"ds_read_b128 {ar(BR+((sg&1)*4+qs)*4,4)}, v{XHA+kk} offset:{qs*2048}" for qs in range(4)]
    em.wait_vm(max(tags[("wq", 0)], tags[("x", 0)]))
    e("s_barrier")
    for t in a_ld(0) + b_ld(0): em.ds_load(t)
    PUB, CHK0, CHK1 = 3, 9, 12
    nw = 4
    for sg in range(NK):
        c, kk = sg >> 2, sg & 3
        need = -1
        if sg + 1 < NK:
            need = max(tags[("wq", sg + 1)], tags[("x", (sg + 1) >> 2)])
        if sg == PUB: need = max(need, tags["lnst"])
        if sg == CHK1: need = max(need, tags["cnt"])
        if need >= 0: em.wait_vm(need)
        em.ds_all_done(); e("s_barrier")
        if N.QSTAMP[0]: K.stamp(em, True, 30 + sg)
        if sg == PUB:
            e(f"s_cmp_eq_u32 s{S_WAVE}, 0\ns_cbranch_scc0 K2_NOATOM")
            e(f"s_lshl_b32 s28, s{S_QB}, 5\nv_mov_b32 v{TMP}, 0\nv_mov_b32 v{TMP+1}, 1")
            e("s_mov_b64 exec, 1")
            e(f"buffer_atomic_add v{TMP+1}, v{TMP}, s[{SRD_DBG}:{SRD_DBG+3}], s28 offen sc1")
            e("s_mov_b64 exec, -1")
            em.label("K2_NOATOM")
            e("s_nop 3")
        if sg == 8: tkpos = moe2.topk_async1(em)
        if sg == 12: moe2.topk_async2(em, tkpos)
        if sg == CHK0:
            e(f"s_lshl_b32 s28, s{S_QB}, 5\nv_mov_b32 v{TMP}, 0")
            tags["cnt"] = em.vmem(f"buffer_load_dword v{CNTV}, v{TMP}, s[{SRD_DBG}:{SRD_DBG+3}], s28 offen sc0 sc1")
        if sg == CHK1:
            e(f"v_readfirstlane_b32 s29, v{CNTV}\ns_cmp_ge_u32 s29, 32\ns_cbranch_scc1 K2_CNTOK")
            em.label("K2_CNTSPIN")
            e(f"s_lshl_b32 s28, s{S_QB}, 5\ns_sleep 2\nbuffer_load_dword v{CNTV}, v{TMP}, s[{SRD_DBG}:{SRD_DBG+3}], s28 offen sc0 sc1\ns_waitcnt vmcnt(0)")
            e(f"v_readfirstlane_b32 s29, v{CNTV}\ns_cmp_ge_u32 s29, 32\ns_cbranch_scc0 K2_CNTSPIN")
            em.label("K2_CNTOK")
            e(f"s_lshl_b32 s28, s{S_QB}, 8\ns_lshl_b32 s29, s{S_WAVE}, 6\ns_add_u32 s28, s28, s29\ns_lshl_b32 s28, s28, 3\ns_add_u32 s28, s28, {hex(WS_STAT)}")
            e(f"v_lshlrev_b32 v{CNTV}, 3, v3")
            for qs in range(4):
                tags["stat"] = em.vmem(f"buffer_load_dwordx2 {vr(STATV+2*qs,2)}, v{CNTV}, s[{SRD_WS}:{SRD_WS+3}], s28 offen offset:{qs*128} sc0 sc1")
        if sg == 16:
            for i in range(9): em.dsop(f"ds_write_b32 v{LNA}, v{XNK+i} offset:{i*128}")
        if sg == 17:
            emit_xnf_store(em)
        mf = []
        for t in range(8):
            for qs in range(4):
                acc = QACC + (t * 4 + qs) * 4
                b = BR + ((sg & 1) * 4 + qs) * 4
                mf.append(f"{MF} {vr(acc,4)}, {ar(aset(sg)+t*4,4)}, {ar(b,4)}, {'0' if sg == 0 else vr(acc,4)}")
            if t < 2:
                mf.append(f"{MF} {vr(CSACC+4*t,4)}, {ar(aset(sg)+t*4,4)}, {ar(AONE,4)}, {'0' if sg == 0 else vr(CSACC+4*t,4)}")
        n = len(mf)
        fill = [[] for _ in range(n + 1)]
        if sg + 1 < NK:
            if ((sg + 1) & 3) == 0 and (sg + 1) < 16:
                d = 65536 if (((sg + 1) >> 2) & 1) else -65536
                for k in range(4): e(f"v_add_u32 v{XB+k}, {d & 0xffffffff:#x}, v{XB+k}")
            lst = b_ld(sg + 1) + a_ld(sg + 1)
            for k, t in enumerate(lst): fill[min((k * 3) // 2 + 1, n - 1)].append(t)
        vm = []
        if nw < NK: vm += wq_items(nw); nw += 1
        XS_ = {3: (2, 0, 2), 4: (2, 2, 3), 5: (2, 3, 4), 7: (3, 0, 2), 8: (3, 2, 3), 9: (3, 3, 4)}
        if sg in XS_: vm += x_items(*XS_[sg])
        if sg == 12: vm += xh_items()[:4] + kv_init("K", 0)
        if sg == 13: vm += xh_items()[4:]
        if sg == 14: vm += kv_init("K", 1)
        if sg == 16: vm += kv_init("V", 0) + kv_init("V", 1)
        if sg == 17: vm += kv_init("K", 2)
        for g in range(n):
            em.mfma(mf[g])
            for t in fill[g]: em.ds_load(t)
            if g % 2 == 1 and vm:
                take = [vm.pop(0)]
                while take[-1][0] == "salu" and vm: take.append(vm.pop(0))
                issue(take)
        issue(vm)
    e("s_nop 7")
    e(f"s_barrier")
    e(f"s_lshl_b32 s28, s{S_WAVE}, 7\ns_add_u32 s28, s28, {CSBUF}\nv_lshlrev_b32 v{CNTV}, 4, v4\nv_add_u32 v144, s28, v{CNTV}")
    e(f"ds_write_b128 v144, {vr(CSACC,4)}\nds_write_b128 v144, {vr(CSACC+4,4)} offset:64")
    em.wait_vm(tags["stat"])
    e("s_waitcnt lgkmcnt(0)\ns_barrier")
    for u in range(4):
        e(f"s_add_u32 s28, s{S_WAVE}, {u}\ns_and_b32 s28, s28, 3\ns_lshl_b32 s28, s28, 7\ns_add_u32 s28, s28, {CSBUF}\nv_add_u32 v{144+u}, s28, v{CNTV}")
    for u in range(4):
        e(f"ds_read_b128 {vr(136,4)}, v{144+u}\nds_read_b128 {vr(140,4)}, v{144+u} offset:64\ns_waitcnt lgkmcnt(0)")
        for qs in range(4):
            st = vr(STATV + 2 * qs, 2)
            for half in range(2):
                acc = QACC + ((2 * u + half) * 4 + qs) * 4
                for k in range(2):
                    e(f"v_pk_mul_f32 {vr(148+2*k,2)}, {vr(136+4*half+2*k,2)}, {st} op_sel:[0,1] op_sel_hi:[1,1]")
                for k in range(2):
                    e(f"v_pk_fma_f32 {vr(acc+2*k,2)}, {vr(acc+2*k,2)}, {st}, {vr(148+2*k,2)} op_sel:[0,0,0] op_sel_hi:[1,0,1]")
                e(f"v_cvt_pk_bf16_f32 v{Qf(qs,u)+2*half}, v{acc}, v{acc+1}")
                e(f"v_cvt_pk_bf16_f32 v{Qf(qs,u)+2*half+1}, v{acc+2}, v{acc+3}")
    em.ds_done = em.ds - 1
    emit_wof_addr(em)
    N.PRE_WAIT[0] = 11
    N.B1WAIT[0] = True

def emit_xnf_store(em):
    e = em.e
    R = 162
    e(f"v_and_b32 v{R}, 7, v1\nv_mul_u32_u24 v{R+1}, {LN_RS}, v{R}")
    e(f"v_lshrrev_b32 v{R+2}, 5, v1\nv_lshl_add_u32 v{R+1}, v{R+2}, 6, v{R+1}")
    e(f"v_bfe_u32 v{R+3}, v1, 3, 2\nv_lshl_add_u32 v{R+1}, v{R+3}, 3, v{R+1}")
    e(f"v_add_u32 v{R+1}, {hex(LN_ST)}, v{R+1}")
    e(f"s_lshl_b32 s28, s{S_WAVE}, 7\nv_add_u32 v{R+1}, s28, v{R+1}")
    e("s_lshr_b32 s28, s3, 4\ns_mul_i32 s28, s28, 18432\ns_and_b32 s29, s3, 15\ns_lshl_b32 s29, s29, 4\ns_add_u32 s28, s28, s29")
    e(f"s_lshl_b32 s29, s{S_WAVE}, 11\ns_add_u32 s28, s28, s29")
    e(f"v_lshlrev_b32 v{R+4}, 10, v{R+2}\nv_lshl_add_u32 v{R+5}, v{R+3}, 4, v{R}\nv_lshl_add_u32 v{R+4}, v{R+5}, 4, v{R+4}")
    G = 168
    for k in range(3): em.dsop(f"ds_read2_b64 {vr(G+4*k,4)}, v{R+1} offset0:{k*64} offset1:{k*64+4}")
    em.ds_all_done()
    for k in range(3):
        if k == 2: e(f"s_cmp_eq_u32 s{S_WAVE}, 0\ns_cselect_b32 s28, s28, 0x7ffffff0")
        em.vmem(f"buffer_store_dwordx4 {vr(G+4*k,4)}, v{R+4}, s[{SRD_WS}:{SRD_WS+3}], s28 offen sc0 sc1")
        e("s_add_u32 s28, s28, 8192")
```

```python
from asmlib import *
import k2 as K
from k2 import *

SRD_X, SRD_WR, SRD_WO, SRD_DBG = 56, 60, 64, 68
LN_LDS = 154496
LN_RS = 1168
WOF_LDS = LDS_X
WOFV = 104
WOFA = 109
WOFF = 112
XNSC = ['sc0 sc1']
S_WOF = 49

def dpp_reduce32(em, v, t, op="v_add_f32"):
    e = em.e
    for rot in (8, 4, 2, 1):
        e("s_nop 1")
        e(f"{op}_dpp v{t}, v{v}, v{v} row_ror:{rot} row_mask:0xf bank_mask:0xf")
        v, t = t, v
    e(f"v_mov_b32 v{t}, v{v}\ns_nop 1\nv_permlane16_swap_b32 v{v}, v{t}\n{op} v{v}, v{v}, v{t}")
    return v

def bf16r(em, dst, src):
    em.e(f"v_cvt_pk_bf16_f32 v{dst}, v{src}, v{src}\nv_lshlrev_b32 v{dst}, 16, v{dst}")

GDE = [True]
EARLY = [True]
SRD_X2 = 92
B1WAIT = [False]
PFN = [0]
PRE_WAIT = [0]
CPF = [True]
CPF3 = [0]
CPF0 = [True]
MAP = ['rq']
KNAME = ['k2_attn_kernel']
MOE_ON = [True]
NPRE = [8, 14]
WQT = {}
def emit_front(em, prof, moe=True):
    e = em.e
    e("s_cmp_ge_u32 s2, 256\ns_cbranch_scc1 K2_END")
    e(f"s_load_dwordx2 s[72:73], s[0:1], {KA_X}")
    if CPF[0] and CPF0[0]:
        e("s_getpc_b64 s[90:91]")
        em.label("PC_k20")
        e(f"s_sub_u32 s90, s90, PC_k20-{KNAME[0]}\ns_subb_u32 s91, s91, 0\nv_lshlrev_b32 v99, 4, v0")
        em.vmem("global_load_dwordx4 v[88:91], v99, s[90:91]")
    e(f"s_load_dwordx2 s[74:75], s[0:1], {KA_WR}")
    e(f"s_load_dwordx2 s[52:53], s[0:1], {KA_WQ}")
    e(f"s_load_dwordx2 s[54:55], s[0:1], {KA_WS}")
    e(f"s_load_dwordx4 s[4:7], s[0:1], {KA_K}")
    e(f"s_load_dwordx2 s[76:77], s[0:1], {KA_WO}")
    e(f"s_load_dwordx2 s[78:79], s[0:1], {KA_DBG}")
    e("s_lshr_b32 s28, s2, 3")
    if MAP[0] == "row":
        e(f"s_mov_b32 s{S_HEAD}, s28\ns_and_b32 s{S_QB}, s2, 7")
    elif MAP[0] == "kv":
        e(f"s_and_b32 s3, s2, 7\ns_lshl_b32 s3, s3, 2\ns_lshr_b32 s29, s28, 3\ns_add_u32 s{S_HEAD}, s3, s29\ns_and_b32 s{S_QB}, s28, 7")
    else:
        e(f"s_and_b32 s3, s2, 1\ns_lshl_b32 s3, s3, 4\ns_lshr_b32 s29, s28, 1\ns_add_u32 s{S_HEAD}, s3, s29")
        e(f"s_and_b32 s3, s2, 6\ns_and_b32 s29, s28, 1\ns_add_u32 s{S_QB}, s3, s29")
    e(f"s_lshl_b32 s3, s{S_QB}, 8\ns_lshl_b32 s28, s{S_HEAD}, 3\ns_add_u32 s3, s3, s28")
    e("v_lshrrev_b32 v5, 5, v0\nv_add_u32 v5, s3, v5")
    e("v_and_b32 v6, 31, v0")
    e("v_mul_u32_u24 v7, 0x480, v5\nv_lshl_add_u32 v7, v6, 2, v7")
    e("v_and_b32 v1, 63, v0\nv_lshrrev_b32 v2, 6, v0")
    X, W, F = 18, 28, 40
    e("s_waitcnt lgkmcnt(0)")
    srd(em, SRD_X, 72, 73, 2048 * 1152)
    for i in range(9): em.vmem(f"buffer_load_dword v{X+i}, v7, s[{SRD_X}:{SRD_X+3}], 0 offen offset:{i*128}")
    xtag = em.vm - 1
    e(f"v_readfirstlane_b32 s{S_WAVE}, v2")
    e("v_lshlrev_b32 v8, 2, v6")
    e("v_and_b32 v3, 15, v1\nv_lshrrev_b32 v4, 4, v1")
    if CPF[0]:
        code_prefetch(em, KNAME[0], "K2_CODE_END", 2, S_WAVE, 1, 100, 99, 92, "k2")
    srd(em, SRD_WR, 74, 75, 1152)
    e(f"s_lshl_b32 s{S_T}, s{S_WAVE}, 16")
    for i in range(2):
        e(f"v_add_u32 v9, {4*i}, v4\nv_lshlrev_b32 v10, 1, v9\nv_xor_b32 v10, v10, v3\nv_lshlrev_b32 v10, 4, v10\nv_lshl_add_u32 v10, v9, 13, v10")
        e(f"v_add_u32 v10, s{S_T}, v10")
        if i: e(f"v_subrev_u32 v10, {1024*i}, v10")
        e(f"v_mov_b32 v{DW+i}, v10")
    e(f"s_lshl_b32 s{S_WQOFF}, s{S_HEAD}, 8")
    e(f"s_lshl_b32 s{S_MX}, s{S_WAVE}, 11")
    for i in range(9): em.vmem(f"buffer_load_dword v{W+i}, v8, s[{SRD_WR}:{SRD_WR+3}], 0 offen offset:{i*128}")
    wtag = em.vm - 1
    srd(em, SRD_WQ, 52, 53, 576 * 8192)
    def wq_dma(sg0, sg1):
        for sg in range(sg0, sg1):
            e(f"s_add_u32 m0, s{S_MX}, {sg*8192}\ns_nop 0")
            for i in range(2):
                WQT[sg] = em.vmem(f"buffer_load_dwordx4 v{DW+i}, s[{SRD_WQ}:{SRD_WQ+3}], s{S_WQOFF} offen offset:{i*1024} lds")
            e(f"s_add_u32 s{S_WQOFF}, s{S_WQOFF}, {32*8192}")
    wq_dma(0, NPRE[0])
    K.stamp(em, prof)
    e(f"s_lshl_b32 s{S_W4K}, s{S_WAVE}, 12")
    e(f"v_lshlrev_b32 v{L16}, 4, v1")
    for s in range(4):
        e(f"v_add_u32 v9, {4*s}, v4\nv_xor_b32 v9, v9, v3\nv_lshlrev_b32 v9, 4, v9\nv_lshl_add_u32 v{KA+s}, v3, 8, v9")
    e("v_bfe_u32 v9, v1, 2, 2\nv_and_b32 v10, 3, v1\nv_lshl_add_u32 v11, v4, 2, v9")
    e("v_and_b32 v12, 7, v11")
    e(f"v_lshlrev_b32 v13, 8, v11\nv_lshl_add_u32 v13, v10, 3, v13\nv_add_u32 v13, {hex(LDS_V)}, v13")
    for T in range(8):
        e(f"v_xor_b32 v14, {T}, v12\nv_lshl_add_u32 v{VA+T}, v14, 5, v13")
    e("v_lshrrev_b32 v14, 1, v10\nv_xor_b32 v14, v14, v12")
    e(f"v_and_b32 v15, 1, v10\nv_lshlrev_b32 v15, 4, v15\nv_lshl_add_u32 v15, v11, 8, v15")
    for s in range(4):
        e(f"v_xor_b32 v16, {2*s}, v14\nv_lshl_add_u32 v{WQA+s}, v16, 5, v15")
    e(f"v_mul_u32_u24 v16, 576, v11\nv_lshl_add_u32 v16, v10, 3, v16\nv_add_u32 v16, {hex(WOF_LDS)}, v16")
    e(f"s_lshl_b32 s{S_T}, s{S_WAVE}, 5\nv_add_u32 v{TMP+8}, s{S_T}, v16")
    for i in range(4):
        e(f"v_add_u32 v9, {4*i}, v4\nv_xor_b32 v9, v9, v3\nv_lshlrev_b32 v9, 4, v9\nv_lshl_add_u32 v9, v4, 8, v9\nv_add_u32 v{DK+i}, s{S_W4K}, v9")
    for i in range(2):
        e(f"v_add_u32 v9, {4*i}, v4\nv_lshlrev_b32 v9, 1, v9\nv_xor_b32 v9, v9, v3\nv_lshlrev_b32 v9, 4, v9\nv_lshl_add_u32 v9, v4, 8, v9\nv_add_u32 v{DV+i}, s{S_W4K}, v9")
    e(f"s_lshl_b32 s{S_T}, s{S_QB}, 4\ns_lshl_b32 s{S_T2}, s{S_WAVE}, 2\ns_add_u32 s{S_T}, s{S_T}, s{S_T2}")
    e(f"s_lshl_b32 s{S_OFB}, s{S_T}, 17\ns_lshl_b32 s{S_T2}, s{S_HEAD}, 12\ns_add_u32 s{S_OFB}, s{S_OFB}, s{S_T2}")
    e(f"s_mul_i32 s{S_T}, s{S_T}, 18432")
    for qs in range(4):
        e(f"s_add_u32 s{S_T2}, s{S_T}, {qs*18432 + WS_XNF}\nv_add_u32 v{XB+qs}, s{S_T2}, v{L16}")
    for k in range(5): e(f"s_mov_b32 s{S_X4+k}, {k*4096}")
    c = f2u(128 ** -0.5 * 1.4426950408889634)
    e(f"s_mov_b32 s{S_C}, {hex(c)}\ns_mov_b32 s{S_C+1}, {hex(c)}")
    e(f"s_mov_b32 s{S_THR}, 0x5f800000\ns_mov_b32 s{S_PASS}, 0")
    for i in range(4): e(f"v_mov_b32 v{TMP}, 0x3f803f80\nv_accvgpr_write_b32 a{AONE+i}, v{TMP}")
    e(f"s_lshr_b32 s{S_T}, s{S_HEAD}, 1\ns_lshl_b32 s{S_T}, s{S_T}, 19")
    e(f"s_add_u32 s4, s4, s{S_T}\ns_addc_u32 s5, s5, 0\ns_add_u32 s6, s6, s{S_T}\ns_addc_u32 s7, s7, 0")
    srd(em, SRD_K, 4, 5, 524288)
    srd(em, SRD_V, 6, 7, 524288)
    srd(em, SRD_WS, 54, 55, WS_SIZE)
    e(f"s_add_u32 s54, s54, {hex(WS_OF)}\ns_addc_u32 s55, s55, 0")
    srd(em, SRD_OF, 54, 55, 2048 * 4096 * 2)
    srd(em, SRD_WO, 76, 77, 4096 * 1152)
    srd(em, SRD_DBG, 78, 79, 256)
    if EARLY[0]:
        emit_wof_addr(em)
        for k in range(5):
            em.vmem(f"s_lshl_b32 s{S_T}, s{S_WAVE}, 10\ns_add_u32 m0, s{S_T}, {WOF_LDS + 4096*k}\ns_nop 0\nbuffer_load_dwordx4 v{WOFV+k}, s[{SRD_WO}:{SRD_WO+3}], s{S_WOF} offen lds")
        e(f"s_load_dwordx2 s[80:81], s[0:1], {KA_WG}\ns_load_dwordx2 s[82:83], s[0:1], {KA_WU}\ns_load_dwordx2 s[84:85], s[0:1], {KA_WD}")
    e("s_mov_b32 s72, 0x3ae38e39\ns_mov_b32 s73, 0x3727c5ac\ns_mov_b32 s74, 0xffff0000")
    em.wait_vm(xtag)
    for i in range(9):
        e(f"v_lshlrev_b32 v{F+2*i}, 16, v{X+i}\nv_and_b32 v{F+2*i+1}, s74, v{X+i}")
    A0, A1, A2, A3 = 60, 61, 62, 63
    e(f"v_add_f32 v{A0}, v{F}, v{F+1}\nv_add_f32 v{A1}, v{F+2}, v{F+3}")
    for i in range(4, 18, 2): e(f"v_add_f32 v{A0}, v{A0}, v{F+i}\nv_add_f32 v{A1}, v{A1}, v{F+i+1}")
    e(f"v_add_f32 v{A0}, v{A0}, v{A1}")
    dpp_reduce32(em, A0, A1)
    e(f"v_mul_f32 v{A0}, s72, v{A0}")
    e(f"v_sub_f32 v{A2}, v{F}, v{A0}\nv_mul_f32 v{A1}, v{A2}, v{A2}\nv_sub_f32 v{A2}, v{F+1}, v{A0}\nv_mul_f32 v{A3}, v{A2}, v{A2}")
    for i in range(2, 18, 2):
        e(f"v_sub_f32 v{A2}, v{F+i}, v{A0}\nv_sub_f32 v64, v{F+i+1}, v{A0}\nv_fmac_f32 v{A1}, v{A2}, v{A2}\nv_fmac_f32 v{A3}, v64, v64")
    e(f"v_add_f32 v{A1}, v{A1}, v{A3}")
    dpp_reduce32(em, A1, A2)
    e(f"v_mul_f32 v{A1}, s72, v{A1}")
    bf16r(em, A0, A0); bf16r(em, A1, A1)
    e(f"v_add_f32 v{A1}, s73, v{A1}")
    bf16r(em, A1, A1)
    e(f"v_sqrt_f32 v{A1}, v{A1}\ns_nop 0")
    bf16r(em, A1, A1)
    e(f"v_rcp_f32 v{A2}, v{A1}\ns_nop 0")
    e(f"v_mov_b32 v{A3}, 0")
    e(f"v_lshrrev_b32 v65, 5, v1\ns_lshl_b32 s28, s{S_WAVE}, 1\nv_add_u32 v65, s28, v65\nv_mul_u32_u24 v65, {LN_RS}, v65\nv_lshl_add_u32 v65, v6, 2, v65\nv_add_u32 v65, {hex(LN_LDS)}, v65")
    em.wait_vm(wtag)
    for i in range(9):
        a, b = F + 2 * i, F + 2 * i + 1
        e(f"v_sub_f32 v{a}, v{a}, v{A0}\nv_sub_f32 v{b}, v{b}, v{A0}")
        e(f"v_cvt_pk_bf16_f32 v66, v{a}, v{b}")
        e(f"v_lshlrev_b32 v{a}, 16, v66\nv_and_b32 v{b}, s74, v66")
        e(f"v_mul_f32 v67, v{a}, v{A2}\nv_mul_f32 v68, v{b}, v{A2}")
        e(f"v_fma_f32 v{a}, -v67, v{A1}, v{a}\nv_fma_f32 v{b}, -v68, v{A1}, v{b}")
        e(f"v_fmac_f32 v67, v{a}, v{A2}\nv_fmac_f32 v68, v{b}, v{A2}")
        e(f"v_cvt_pk_bf16_f32 v{X+i}, v67, v68")
        e(f"v_dot2_f32_bf16 v{A3}, v{X+i}, v{W+i}, v{A3}")
        e(f"ds_write_b32 v65, v{X+i} offset:{i*128}")
    e("s_nop 2")
    dpp_reduce32(em, A3, A2)
    bf16r(em, A3, A3)
    e(f"v_lshlrev_b32 v66, 2, v5\nv_add_u32 v66, {hex(WS_R)}, v66")
    e("v_cmp_eq_u32 vcc, 0, v6\ns_and_saveexec_b64 s[76:77], vcc")
    em.vmem(f"buffer_store_dword v{A3}, v66, s[{SRD_WS}:{SRD_WS+3}], 0 offen sc0 sc1")
    e("s_mov_b64 exec, s[76:77]")
    e("s_waitcnt lgkmcnt(0)\ns_barrier")
    e(f"v_and_b32 v66, 7, v1\nv_mul_u32_u24 v67, {LN_RS}, v66")
    e("v_lshrrev_b32 v68, 5, v1\nv_lshl_add_u32 v67, v68, 6, v67")
    e("v_bfe_u32 v69, v1, 3, 2\nv_lshl_add_u32 v67, v69, 3, v67")
    e(f"v_add_u32 v67, {hex(LN_LDS)}, v67")
    e(f"s_lshl_b32 s28, s{S_WAVE}, 7\nv_add_u32 v67, s28, v67")
    e("s_lshr_b32 s28, s3, 4\ns_mul_i32 s28, s28, 18432\ns_and_b32 s29, s3, 15\ns_lshl_b32 s29, s29, 4\ns_add_u32 s28, s28, s29")
    e(f"s_lshl_b32 s29, s{S_WAVE}, 11\ns_add_u32 s28, s28, s29")
    if WS_XNF: e(f"s_add_u32 s28, s28, {hex(WS_XNF)}")
    e("v_lshlrev_b32 v70, 10, v68\nv_lshl_add_u32 v71, v69, 4, v66\nv_lshl_add_u32 v70, v71, 4, v70")
    G = 72
    for k in range(3):
        e(f"ds_read2_b64 {vr(G+4*k,4)}, v67 offset0:{k*64} offset1:{k*64+4}")
    e("s_waitcnt lgkmcnt(0)")
    for k in range(2):
        em.vmem(f"buffer_store_dwordx4 {vr(G+4*k,4)}, v70, s[{SRD_WS}:{SRD_WS+3}], s28 offen sc0 sc1")
        e(f"s_add_u32 s28, s28, 8192")
    e(f"s_cmp_eq_u32 s{S_WAVE}, 0\ns_cbranch_scc0 K2_NO9")
    e(f"buffer_store_dwordx4 {vr(G+8,4)}, v70, s[{SRD_WS}:{SRD_WS+3}], s28 offen sc0 sc1")
    em.label("K2_NO9")
    e(f"s_cmp_eq_u32 s2, 0\ns_cbranch_scc0 K2_NOZ")
    e(f"v_mov_b32 v76, 0\nv_mov_b32 v77, 0\nv_mov_b32 v78, 0\nv_mov_b32 v79, 0\ns_lshl_b32 s28, s{S_WAVE}, 10\ns_add_u32 s28, s28, {hex(WS_FLAGS)}")
    for zk in range(3):
        e(f"buffer_store_dwordx4 v[76:79], v{L16}, s[{SRD_WS}:{SRD_WS+3}], s28 offen sc0 sc1\ns_add_u32 s28, s28, 4096")
    em.label("K2_NOZ")
    e("s_waitcnt vmcnt(0)\ns_barrier")
    K.stamp(em, prof)
    e(f"s_cmp_eq_u32 s{S_WAVE}, 0\ns_cbranch_scc0 K2_NOATOM")
    e(f"s_lshl_b32 s28, s{S_QB}, 5")
    e("v_mov_b32 v66, 0\nv_mov_b32 v67, 1")
    e("s_mov_b64 s[76:77], exec\ns_mov_b64 exec, 1")
    e(f"buffer_atomic_add v67, v66, s[{SRD_DBG}:{SRD_DBG+3}], s28 offen sc1")
    e("s_mov_b64 exec, s[76:77]")
    em.label("K2_NOATOM")
    em.vm = 0
    wq_dma(NPRE[0], NPRE[1])
    if EARLY[0]:
        import moe2
        for k in range(5):
            for j in range(2):
                e(f"ds_read_b64_tr_b16 {vr(WOFF+4*k+2*j,2)}, v{WOFA} offset:{k*128 + j*16*576}")
        e(f"s_lshr_b32 s{S_T}, s2, 1\ns_mul_i32 s{S_T}, s{S_T}, 36\ns_and_b32 s{S_T2}, s2, 1\ns_mul_i32 s{S_T2}, s{S_T2}, 18\ns_add_u32 s{S_T}, s{S_T}, s{S_T2}\ns_add_u32 s{S_T}, s{S_T}, s{S_WAVE}\ns_lshl_b32 s{S_T}, s{S_T}, 10\ns_add_u32 s{S_WOF}, s{S_T}, {hex(WS_WOF)}")
        e("s_waitcnt lgkmcnt(0)")
        for k in range(5):
            if k == 4: e(f"s_cmp_lt_u32 s{S_WAVE}, 2\ns_cselect_b32 s{S_WOF}, s{S_WOF}, 0x7ffffff0")
            em.vmem(f"buffer_store_dwordx4 {vr(WOFF+4*k,4)}, v{L16}, s[{SRD_WS}:{SRD_WS+3}], s{S_WOF} offen sc0 sc1")
            e(f"s_add_u32 s{S_WOF}, s{S_WOF}, 4096")
        moe2.setup_front(em)
        if GDE[0]:
            import moe3
            moe3.front_setup(em)

    e(f"s_cmp_eq_u32 s{S_WAVE}, 0\ns_cbranch_scc0 K2_FLAGDONE")
    e(f"s_lshl_b32 s28, s{S_QB}, 5\nv_mov_b32 v66, 0")
    e("s_mov_b64 s[76:77], exec\ns_mov_b64 exec, 1")
    em.label("K2_POLL")
    e(f"buffer_load_dword v68, v66, s[{SRD_DBG}:{SRD_DBG+3}], s28 offen sc0 sc1")
    e("s_waitcnt vmcnt(0)")
    e("v_readfirstlane_b32 s29, v68")
    e("s_cmp_ge_u32 s29, 32\ns_cbranch_scc1 K2_POLLED\ns_sleep 2\ns_branch K2_POLL")
    em.label("K2_POLLED")
    e("s_mov_b64 exec, s[76:77]")
    em.label("K2_FLAGDONE")
    e("s_barrier")

def emit_qproj2(em):
    e = em.e
    NK = 18
    tags = {}
    def xn_ld(sg):
        return [("vmem", f"buffer_load_dwordx4 {ar(AO + ((sg & 7) * 4 + qs) * 4, 4)}, v{XB+qs}, s[{SRD_WS}:{SRD_WS+3}], s{S_X4+(sg>>2)} offen offset:{(sg&3)*1024} {XNSC[0]}", ("xn", sg)) for qs in range(4)]
    def kv_init(kind, T):
        sreg = S_KOFF if kind == "K" else S_VOFF
        r = [("salu", f"s_mov_b32 s{sreg}, {T*16384}")]
        r += [(k, t) for k, t in (dma_k(T) if kind == "K" else dma_v(T))]
        return r
    def issue(items):
        prev = None
        for it in items:
            if it[0] == "vmem":
                if prev is not None and "m0" in prev[1] and prev[0] == "salu": e("s_nop 0")
                idx = em.vmem(it[1])
                if len(it) > 2: tags[it[2]] = idx
            else: e(it[1])
            prev = it
    def aset(sg): return AK + (sg & 1) * 32
    def a_ld(sg):
        r = []
        for t in range(8):
            s, half = t >> 1, t & 1
            for j in range(2):
                r.append(f"ds_read_b64_tr_b16 {ar(aset(sg)+t*4+2*j,2)}, v{WQA+s} offset:{(sg&7)*8192 + j*4096 + 8*half}")
        return r
    AHEAD = 6
    def wq_items(sg):
        r = [("salu", f"s_add_u32 m0, s{S_MX}, {sg*8192}")]
        r += [("vmem", f"buffer_load_dwordx4 v{DW+i}, s[{SRD_WQ}:{SRD_WQ+3}], s{S_WQOFF} offen offset:{i*1024} lds", ("wq", sg)) for i in range(2)]
        r += [("salu", f"s_add_u32 s{S_WQOFF}, s{S_WQOFF}, {32*8192}")]
        return r
    for sg, ix in WQT.items():
        if sg >= NPRE[0]: tags[("wq", sg)] = ix
        else: tags[("wq", sg)] = -1
    nxt = NPRE[1]
    for sg in range(AHEAD): issue(xn_ld(sg))
    if tags[("wq", 0)] >= 0: em.wait_vm(tags[("wq", 0)])
    e("s_barrier")
    for t in a_ld(0): em.ds_load(t)
    kv_at = {1: ("K", 0), 3: ("K", 1), 5: ("K", 2), 9: ("V", 0), 11: ("V", 1)}
    if GDE[0]: kv_at = {1: ("K", 0), 3: ("K", 1), 9: ("V", 0)}
    for sg in range(NK):
        need = tags[("xn", sg)]
        if sg + 1 < NK: need = max(need, tags[("wq", sg + 1)])
        em.wait_vm(need)
        em.ds_all_done(); e("s_barrier")
        if QSTAMP[0]: K.stamp(em, True, 30 + sg)
        if CPF[0] and CPF3[0] and sg == CPF3[0]:
            code_prefetch(em, "K2_PRE", "K2_LAST", 2, S_WAVE, 1, 136, 140, 92, "k2c", forward=True)
        if GDE[0]:
            import moe3
            moe3.qproj_pre(em, sg)
        elif MOE_ON[0]:
            import moe2
            if sg == 8: tkpos = moe2.topk_async1(em)
            if sg == 12: moe2.topk_async2(em, tkpos)
        mf = []
        for t in range(8):
            for qs in range(4):
                acc = QACC + (t * 4 + qs) * 4
                b = AO + ((sg & 7) * 4 + qs) * 4
                mf.append(f"{MF} {vr(acc,4)}, {ar(aset(sg)+t*4,4)}, {ar(b,4)}, {'0' if sg == 0 else vr(acc,4)}")
        fill = [[] for _ in range(33)]
        if sg + 1 < NK:
            if ((sg + 1) & 7) == 0:
                for s in range(4): e(f"v_add_u32 v{WQA+s}, 0x10000, v{WQA+s}")
            for k, t in enumerate(a_ld(sg + 1)): fill[(k * 3) // 2 + 1].append(("ds", t))
        vm = []
        if nxt < NK: vm += wq_items(nxt); nxt += 1
        if nxt < NK and sg < 4: vm += wq_items(nxt); nxt += 1
        if sg + AHEAD < NK: vm += xn_ld(sg + AHEAD)
        if sg in kv_at: vm += kv_init(*kv_at[sg])
        if GDE[0]: vm += moe3.qproj_vm(sg)
        if EARLY[0] and MOE_ON[0] and not GDE[0] and 12 <= sg <= 15:
            import moe2
            if sg == 12: pfl = moe2.prefetch_items(); PFN[0] = em.vm
            take_n = {12: 9, 13: 9, 14: 8, 15: 10}[sg]
            vm += pfl[:take_n]; pfl = pfl[take_n:]
        for g in range(32):
            em.mfma(mf[g])
            for k, t in fill[g]: em.ds_load(t)
            if g % 2 == 1 and vm:
                take = [vm.pop(0)]
                while take[-1][0] == "salu" and vm: take.append(vm.pop(0))
                issue(take)
        issue(vm)
    e("s_nop 7\ns_nop 3")
    for qs in range(4):
        for s in range(4):
            for half in range(2):
                acc = QACC + ((2 * s + half) * 4 + qs) * 4
                e(f"v_pk_mul_f32 {vr(acc,2)}, {vr(acc,2)}, s[{S_C}:{S_C+1}]")
                e(f"v_pk_mul_f32 {vr(acc+2,2)}, {vr(acc+2,2)}, s[{S_C}:{S_C+1}]")
            for half in range(2):
                acc = QACC + ((2 * s + half) * 4 + qs) * 4
                e(f"v_cvt_pk_bf16_f32 v{Qf(qs,s)+2*half}, v{acc}, v{acc+1}")
                e(f"v_cvt_pk_bf16_f32 v{Qf(qs,s)+2*half+1}, v{acc+2}, v{acc+3}")
    if not EARLY[0]: emit_wof_addr(em)
    PRE_WAIT[0] = 27 if (EARLY[0] and MOE_ON[0]) else 0
    if GDE[0]:
        moe3.emit_gd(em)
        issue(kv_init("K", 2) + kv_init("V", 1))
        PRE_WAIT[0] = 63
        B1WAIT[0] = True

def wof_extras(step):
    dma, xds = [], []
    if EARLY[0]: return dma, xds
    if step in (0, 1):
        ks = (0, 1, 2) if step == 0 else (3, 4)
        for k in ks:
            dma.append(("vmem", f"s_lshl_b32 s{S_T}, s{S_WAVE}, 10\ns_add_u32 m0, s{S_T}, {WOF_LDS + 4096*k}\ns_nop 0\nbuffer_load_dwordx4 v{WOFV+k}, s[{SRD_WO}:{SRD_WO+3}], s{S_WOF} offen lds"))
    if step in (4, 5):
        ks = (0, 1, 2) if step == 4 else (3, 4)
        for k in ks:
            for j in range(2):
                xds.append(f"ds_read_b64_tr_b16 {vr(WOFF+4*k+2*j,2)}, v{WOFA} offset:{k*128 + j*16*576}")
    if step == 6:
        dma.append(("salu", f"s_lshr_b32 s{S_T}, s2, 1\ns_mul_i32 s{S_T}, s{S_T}, 36"))
        dma.append(("salu", f"s_and_b32 s{S_T2}, s2, 1\ns_mul_i32 s{S_T2}, s{S_T2}, 18"))
        dma.append(("salu", f"s_add_u32 s{S_T}, s{S_T}, s{S_T2}\ns_add_u32 s{S_T}, s{S_T}, s{S_WAVE}"))
        dma.append(("salu", f"s_lshl_b32 s{S_T}, s{S_T}, 10\ns_add_u32 s{S_WOF}, s{S_T}, {hex(WS_WOF)}"))
        for k in range(4):
            dma.append(("vmem", f"buffer_store_dwordx4 {vr(WOFF+4*k,4)}, v{L16}, s[{SRD_WS}:{SRD_WS+3}], s{S_WOF} offen sc0 sc1" + f"\ns_add_u32 s{S_WOF}, s{S_WOF}, 4096",
                        {"needs": [f"v{WOFF+4*k+r}" for r in range(4)]}))
    if step == 7:
        dma.append(("vmem", f"s_cmp_lt_u32 s{S_WAVE}, 2\ns_cselect_b32 s{S_T}, s{S_WOF}, 0x7ffffff0\nbuffer_store_dwordx4 {vr(WOFF+16,4)}, v{L16}, s[{SRD_WS}:{SRD_WS+3}], s{S_T} offen sc0 sc1",
                    {"needs": [f"v{WOFF+16+r}" for r in range(4)]}))
    return dma, xds

CSBUF = 162816
CSACC = 136
STATV = TMP
CNTV = TMP + 9
F3 = {}

def emit_front3(em, prof):
    e = em.e
    e("s_cmp_ge_u32 s2, 256\ns_cbranch_scc1 K2_END")
    e(f"s_load_dwordx2 s[72:73], s[0:1], {KA_X}")
    e(f"s_load_dwordx2 s[74:75], s[0:1], {KA_WR}")
    e(f"s_load_dwordx2 s[52:53], s[0:1], {KA_WQ}")
    e(f"s_load_dwordx2 s[54:55], s[0:1], {KA_WS}")
    e(f"s_load_dwordx4 s[4:7], s[0:1], {KA_K}")
    e(f"s_load_dwordx2 s[76:77], s[0:1], {KA_WO}")
    e(f"s_load_dwordx2 s[78:79], s[0:1], {KA_DBG}")
    e("v_and_b32 v1, 63, v0\nv_lshrrev_b32 v2, 6, v0\ns_nop 0")
    e(f"v_readfirstlane_b32 s{S_WAVE}, v2")
    e("s_lshr_b32 s28, s2, 3")
    e(f"s_and_b32 s3, s2, 1\ns_lshl_b32 s3, s3, 4\ns_lshr_b32 s29, s28, 1\ns_add_u32 s{S_HEAD}, s3, s29")
    e(f"s_and_b32 s3, s2, 6\ns_and_b32 s29, s28, 1\ns_add_u32 s{S_QB}, s3, s29")
    e(f"s_lshl_b32 s3, s{S_QB}, 8\ns_lshl_b32 s28, s{S_HEAD}, 3\ns_add_u32 s3, s3, s28")
    e(f"s_lshl_b32 s28, s{S_WAVE}, 1\ns_add_u32 s29, s3, s28")
    e("v_lshrrev_b32 v5, 5, v1\nv_add_u32 v5, s29, v5")
    e("v_and_b32 v6, 31, v1")
    e("v_mul_u32_u24 v7, 0x480, v5\nv_lshl_add_u32 v7, v6, 2, v7")
    e("v_lshlrev_b32 v8, 2, v6")
    e("v_and_b32 v3, 15, v1\nv_lshrrev_b32 v4, 4, v1")
    e(f"s_lshl_b32 s{S_T}, s{S_QB}, 8\ns_lshl_b32 s{S_T2}, s{S_WAVE}, 6\ns_add_u32 s{S_T}, s{S_T}, s{S_T2}")
    e(f"v_add_u32 v9, s{S_T}, v3\nv_mul_u32_u24 v9, 0x480, v9\nv_lshl_add_u32 v{XB}, v4, 4, v9")
    for qs in range(1, 4): e(f"v_add_u32 v{XB+qs}, {qs*16*1152}, v{XB}")
    e(f"s_and_b32 s28, s{S_WAVE}, 1\ns_lshl_b32 s28, s28, 2\nv_or_b32 v9, s28, v4\nv_lshlrev_b32 v9, 1, v9\nv_xor_b32 v9, v9, v3\nv_lshlrev_b32 v9, 4, v9")
    e(f"s_lshl_b32 s{S_T}, s{S_WAVE}, 16")
    e(f"v_lshl_add_u32 v9, v4, 13, v9\nv_add_u32 v{DW}, s{S_T}, v9\nv_add_u32 v{DW+1}, {4*8192-1024}, v{DW}")
    e(f"s_lshl_b32 s{S_WQOFF}, s{S_HEAD}, 8")
    e(f"s_lshl_b32 s{S_MX}, s{S_WAVE}, 11")
    e("s_waitcnt lgkmcnt(0)")
    srd(em, SRD_X, 72, 73, 2048 * 1152)
    srd(em, SRD_WR, 74, 75, 1152)
    srd(em, SRD_WQ, 52, 53, 576 * 8192)
    X, W, F = 18, 28, 40
    for i in range(9): em.vmem(f"buffer_load_dword v{X+i}, v7, s[{SRD_X}:{SRD_X+3}], 0 offen offset:{i*128}")
    xtag = em.vm - 1
    for i in range(9): em.vmem(f"buffer_load_dword v{W+i}, v8, s[{SRD_WR}:{SRD_WR+3}], 0 offen offset:{i*128}")
    wtag = em.vm - 1
    tags = F3; tags.clear()
    def wq_dma(sg):
        e(f"s_add_u32 m0, s{S_MX}, {sg*8192}\ns_nop 0")
        for i in range(2):
            tags[("wq", sg)] = em.vmem(f"buffer_load_dwordx4 v{DW+i}, s[{SRD_WQ}:{SRD_WQ+3}], s{S_WQOFF} offen offset:{i*1024} lds")
        e(f"s_add_u32 s{S_WQOFF}, s{S_WQOFF}, {32*8192}")
    def xf_ld(sg):
        for qs in range(4):
            tags[("xn", sg)] = em.vmem(f"buffer_load_dwordx4 {ar(AO + ((sg & 7) * 4 + qs) * 4, 4)}, v{XB+qs}, s[{SRD_X}:{SRD_X+3}], 0 offen offset:{sg*64}")
    for sg in range(F3N[0]):
        wq_dma(sg); xf_ld(sg)
    for sg in range(F3N[0], F3N[1]): wq_dma(sg)
    K.stamp(em, prof)
    e(f"s_lshl_b32 s{S_W4K}, s{S_WAVE}, 12")
    e(f"v_lshlrev_b32 v{L16}, 4, v1")
    for u in range(4):
        e(f"s_add_u32 s28, s{S_WAVE}, {u}\ns_and_b32 s28, s28, 3\ns_lshl_b32 s28, s28, 2")
        e(f"v_add_u32 v9, s28, v4\nv_xor_b32 v9, v9, v3\nv_lshlrev_b32 v9, 4, v9\nv_lshl_add_u32 v{KA+u}, v3, 8, v9")
    e("v_bfe_u32 v9, v1, 2, 2\nv_and_b32 v10, 3, v1\nv_lshl_add_u32 v11, v4, 2, v9")
    e("v_and_b32 v12, 7, v11")
    e(f"v_lshlrev_b32 v13, 8, v11\nv_lshl_add_u32 v13, v10, 3, v13\nv_add_u32 v13, {hex(LDS_V)}, v13")
    for T in range(8):
        e(f"v_xor_b32 v14, {T}, v12\nv_lshl_add_u32 v{VA+T}, v14, 5, v13")
    e("v_and_b32 v14, 1, v4\nv_lshl_add_u32 v14, v14, 2, v9")
    e("v_lshrrev_b32 v15, 1, v10\nv_xor_b32 v14, v14, v15")
    e("v_lshl_add_u32 v15, v4, 3, v9\nv_lshlrev_b32 v15, 8, v15\nv_and_b32 v16, 1, v10\nv_lshl_add_u32 v15, v16, 4, v15")
    for u in range(4):
        e(f"s_add_u32 s28, s{S_WAVE}, {u}\ns_and_b32 s28, s28, 3\ns_lshl_b32 s28, s28, 1")
        e(f"v_xor_b32 v16, s28, v14\nv_lshl_add_u32 v{WQA+u}, v16, 5, v15")
    e(f"v_mul_u32_u24 v16, 576, v11\nv_lshl_add_u32 v16, v10, 3, v16\nv_add_u32 v16, {hex(WOF_LDS)}, v16")
    e(f"s_lshl_b32 s{S_T}, s{S_WAVE}, 5\nv_add_u32 v{TMP+8}, s{S_T}, v16")
    for i in range(4):
        e(f"v_add_u32 v9, {4*i}, v4\nv_xor_b32 v9, v9, v3\nv_lshlrev_b32 v9, 4, v9\nv_lshl_add_u32 v9, v4, 8, v9\nv_add_u32 v{DK+i}, s{S_W4K}, v9")
    for i in range(2):
        e(f"v_add_u32 v9, {4*i}, v4\nv_lshlrev_b32 v9, 1, v9\nv_xor_b32 v9, v9, v3\nv_lshlrev_b32 v9, 4, v9\nv_lshl_add_u32 v9, v4, 8, v9\nv_add_u32 v{DV+i}, s{S_W4K}, v9")
    e(f"s_lshl_b32 s{S_T}, s{S_QB}, 4\ns_lshl_b32 s{S_T2}, s{S_WAVE}, 2\ns_add_u32 s{S_T}, s{S_T}, s{S_T2}")
    e(f"s_lshl_b32 s{S_OFB}, s{S_T}, 17\ns_lshl_b32 s{S_T2}, s{S_HEAD}, 12\ns_add_u32 s{S_OFB}, s{S_OFB}, s{S_T2}")
    for k in range(5): e(f"s_mov_b32 s{S_X4+k}, {k*4096}")
    e(f"s_mov_b32 s{S_THR}, 0x5f800000\ns_mov_b32 s{S_PASS}, 0")
    for i in range(4): e(f"v_mov_b32 v{TMP}, 0x3f803f80\nv_accvgpr_write_b32 a{AONE+i}, v{TMP}")
    e(f"s_lshr_b32 s{S_T}, s{S_HEAD}, 1\ns_lshl_b32 s{S_T}, s{S_T}, 19")
    e(f"s_add_u32 s4, s4, s{S_T}\ns_addc_u32 s5, s5, 0\ns_add_u32 s6, s6, s{S_T}\ns_addc_u32 s7, s7, 0")
    srd(em, SRD_K, 4, 5, 524288)
    srd(em, SRD_V, 6, 7, 524288)
    srd(em, SRD_WS, 54, 55, WS_SIZE)
    e(f"s_add_u32 s54, s54, {hex(WS_OF)}\ns_addc_u32 s55, s55, 0")
    srd(em, SRD_OF, 54, 55, 2048 * 4096 * 2)
    srd(em, SRD_WO, 76, 77, 4096 * 1152)
    srd(em, SRD_DBG, 78, 79, 256)
    c = f2u(128 ** -0.5 * 1.4426950408889634)
    e(f"s_mov_b32 s72, 0x3ae38e39\ns_mov_b32 s73, 0x3727c5ac\ns_mov_b32 s74, 0xffff0000\ns_mov_b32 s75, {hex(c)}")
    em.wait_vm(xtag)
    for i in range(9):
        e(f"v_lshlrev_b32 v{F+2*i}, 16, v{X+i}\nv_and_b32 v{F+2*i+1}, s74, v{X+i}")
    A0, A1, A2, A3 = 60, 61, 62, 63
    e(f"v_add_f32 v{A0}, v{F}, v{F+1}\nv_add_f32 v{A1}, v{F+2}, v{F+3}")
    for i in range(4, 18, 2): e(f"v_add_f32 v{A0}, v{A0}, v{F+i}\nv_add_f32 v{A1}, v{A1}, v{F+i+1}")
    e(f"v_add_f32 v{A0}, v{A0}, v{A1}")
    dpp_reduce32(em, A0, A1)
    e(f"v_mul_f32 v{A0}, s72, v{A0}")
    e(f"v_sub_f32 v{A2}, v{F}, v{A0}\nv_mul_f32 v{A1}, v{A2}, v{A2}\nv_sub_f32 v{A2}, v{F+1}, v{A0}\nv_mul_f32 v{A3}, v{A2}, v{A2}")
    for i in range(2, 18, 2):
        e(f"v_sub_f32 v{A2}, v{F+i}, v{A0}\nv_sub_f32 v64, v{F+i+1}, v{A0}\nv_fmac_f32 v{A1}, v{A2}, v{A2}\nv_fmac_f32 v{A3}, v64, v64")
    e(f"v_add_f32 v{A1}, v{A1}, v{A3}")
    dpp_reduce32(em, A1, A2)
    e(f"v_mul_f32 v{A1}, s72, v{A1}")
    bf16r(em, A0, A0); bf16r(em, A1, A1)
    e(f"v_add_f32 v{A1}, s73, v{A1}")
    bf16r(em, A1, A1)
    e(f"v_sqrt_f32 v{A1}, v{A1}\ns_nop 0")
    bf16r(em, A1, A1)
    e(f"v_rcp_f32 v{A2}, v{A1}\ns_nop 0")
    e(f"v_mul_f32 v70, s75, v{A2}\nv_mul_f32 v71, v70, v{A0}\nv_sub_f32 v71, 0, v71")
    e(f"v_mov_b32 v{A3}, 0")
    e(f"v_lshrrev_b32 v65, 5, v1\ns_lshl_b32 s28, s{S_WAVE}, 1\nv_add_u32 v65, s28, v65\nv_mul_u32_u24 v65, {LN_RS}, v65\nv_lshl_add_u32 v65, v6, 2, v65\nv_add_u32 v65, {hex(LN_LDS)}, v65")
    em.wait_vm(wtag)
    for i in range(9):
        a, b = F + 2 * i, F + 2 * i + 1
        e(f"v_sub_f32 v{a}, v{a}, v{A0}\nv_sub_f32 v{b}, v{b}, v{A0}")
        e(f"v_cvt_pk_bf16_f32 v66, v{a}, v{b}")
        e(f"v_lshlrev_b32 v{a}, 16, v66\nv_and_b32 v{b}, s74, v66")
        e(f"v_mul_f32 v67, v{a}, v{A2}\nv_mul_f32 v68, v{b}, v{A2}")
        e(f"v_fma_f32 v{a}, -v67, v{A1}, v{a}\nv_fma_f32 v{b}, -v68, v{A1}, v{b}")
        e(f"v_fmac_f32 v67, v{a}, v{A2}\nv_fmac_f32 v68, v{b}, v{A2}")
        e(f"v_cvt_pk_bf16_f32 v{X+i}, v67, v68")
        e(f"v_dot2_f32_bf16 v{A3}, v{X+i}, v{W+i}, v{A3}")
        e(f"ds_write_b32 v65, v{X+i} offset:{i*128}")
    e("s_nop 2")
    dpp_reduce32(em, A3, A2)
    bf16r(em, A3, A3)
    e(f"v_lshlrev_b32 v66, 2, v5\nv_add_u32 v66, {hex(WS_R)}, v66\nv_lshlrev_b32 v67, 3, v5\nv_add_u32 v67, {hex(WS_STAT)}, v67")
    e("v_cmp_eq_u32 vcc, 0, v6\ns_and_saveexec_b64 s[76:77], vcc")
    em.vmem(f"buffer_store_dword v{A3}, v66, s[{SRD_WS}:{SRD_WS+3}], 0 offen sc0 sc1")
    em.vmem(f"buffer_store_dwordx2 v[70:71], v67, s[{SRD_WS}:{SRD_WS+3}], 0 offen sc0 sc1")
    e("s_mov_b64 exec, s[76:77]")
    e("s_waitcnt lgkmcnt(0)\ns_barrier")
    e(f"v_and_b32 v66, 7, v1\nv_mul_u32_u24 v67, {LN_RS}, v66")
    e("v_lshrrev_b32 v68, 5, v1\nv_lshl_add_u32 v67, v68, 6, v67")
    e("v_bfe_u32 v69, v1, 3, 2\nv_lshl_add_u32 v67, v69, 3, v67")
    e(f"v_add_u32 v67, {hex(LN_LDS)}, v67")
    e(f"s_lshl_b32 s28, s{S_WAVE}, 7\nv_add_u32 v67, s28, v67")
    e("s_lshr_b32 s28, s3, 4\ns_mul_i32 s28, s28, 18432\ns_and_b32 s29, s3, 15\ns_lshl_b32 s29, s29, 4\ns_add_u32 s28, s28, s29")
    e(f"s_lshl_b32 s29, s{S_WAVE}, 11\ns_add_u32 s28, s28, s29")
    if WS_XNF: e(f"s_add_u32 s28, s28, {hex(WS_XNF)}")
    e("v_lshlrev_b32 v70, 10, v68\nv_lshl_add_u32 v71, v69, 4, v66\nv_lshl_add_u32 v70, v71, 4, v70")
    G = 72
    for k in range(3):
        e(f"ds_read2_b64 {vr(G+4*k,4)}, v67 offset0:{k*64} offset1:{k*64+4}")
    e("s_waitcnt lgkmcnt(0)")
    for k in range(2):
        em.vmem(f"buffer_store_dwordx4 {vr(G+4*k,4)}, v70, s[{SRD_WS}:{SRD_WS+3}], s28 offen sc0 sc1")
        e(f"s_add_u32 s28, s28, 8192")
    e(f"s_cmp_eq_u32 s{S_WAVE}, 0\ns_cselect_b32 s28, s28, 0x7ffffff0")
    em.vmem(f"buffer_store_dwordx4 {vr(G+8,4)}, v70, s[{SRD_WS}:{SRD_WS+3}], s28 offen sc0 sc1")
    e(f"s_lshl_b32 s29, s2, 2\ns_add_u32 s29, s29, s{S_WAVE}\ns_cmp_eq_u32 s29, 1\ns_mov_b32 s28, 0x7ffffff0\ns_cselect_b32 s28, {hex(WS_FLAGS)}, s28")
    e("v_mov_b32 v84, 0\nv_mov_b32 v85, 0\nv_mov_b32 v86, 0\nv_mov_b32 v87, 0")
    tags["lnst"] = em.vmem(f"buffer_store_dwordx4 v[84:87], v{L16}, s[{SRD_WS}:{SRD_WS+3}], s28 offen")
    em.ds_done = em.ds - 1
    if not QSTAMP[0]:
        K.stamp(em, prof)
        K.stamp(em, prof)

QSTAMP = [False]
TSTAMP = [False]
FRONT = [2]
F3N = [5, 8]
def emit_qproj3(em):
    e = em.e
    NK = 18
    tags = F3
    def xn_ld(sg):
        return [("vmem", f"buffer_load_dwordx4 {ar(AO + ((sg & 7) * 4 + qs) * 4, 4)}, v{XB+qs}, s[{SRD_X}:{SRD_X+3}], 0 offen offset:{sg*64}", ("xn", sg)) for qs in range(4)]
    def wq_items(sg):
        r = [("salu", f"s_add_u32 m0, s{S_MX}, {sg*8192}")]
        r += [("vmem", f"buffer_load_dwordx4 v{DW+i}, s[{SRD_WQ}:{SRD_WQ+3}], s{S_WQOFF} offen offset:{i*1024} lds", ("wq", sg)) for i in range(2)]
        r += [("salu", f"s_add_u32 s{S_WQOFF}, s{S_WQOFF}, {32*8192}")]
        return r
    def kv_init(kind, T):
        sreg = S_KOFF if kind == "K" else S_VOFF
        r = [("salu", f"s_mov_b32 s{sreg}, {T*16384}")]
        r += [(k, t) for k, t in (dma_k(T) if kind == "K" else dma_v(T))]
        return r
    def issue(items):
        prev = None
        for it in items:
            if it[0] == "vmem":
                if prev is not None and "m0" in prev[1] and prev[0] == "salu": e("s_nop 0")
                idx = em.vmem(it[1])
                if len(it) > 2: tags[it[2]] = idx
            else: e(it[1])
            prev = it
    def aset(sg): return AK + (sg & 1) * 32
    def a_ld(sg):
        r = []
        for t in range(8):
            u, half = t >> 1, t & 1
            for j in range(2):
                r.append(f"ds_read_b64_tr_b16 {ar(aset(sg)+t*4+2*j,2)}, v{WQA+u} offset:{(sg&7)*8192 + j*1024 + 8*half}")
        return r
    nx = F3N[0]; nw = F3N[1]
    AHEAD = 6
    em.wait_vm(tags[("wq", 0)])
    e("s_barrier")
    for t in a_ld(0): em.ds_load(t)
    kv_at = {1: ("K", 0), 3: ("K", 1), 5: ("K", 2), 9: ("V", 0), 11: ("V", 1)}
    PUB, CHK0, CHK1 = 3, 9, 12
    for sg in range(NK):
        need = tags[("xn", sg)]
        if sg + 1 < NK: need = max(need, tags[("wq", sg + 1)])
        if sg == PUB: need = max(need, tags["lnst"])
        if sg == CHK1: need = max(need, tags["cnt"])
        em.wait_vm(need)
        em.ds_all_done(); e("s_barrier")
        if QSTAMP[0]: K.stamp(em, True, 30 + sg)
        if sg == PUB:
            e(f"s_cmp_eq_u32 s{S_WAVE}, 0\ns_cbranch_scc0 K2_NOATOM")
            e(f"s_lshl_b32 s28, s{S_QB}, 5\nv_mov_b32 v{TMP}, 0\nv_mov_b32 v{TMP+1}, 1")
            e("s_mov_b64 s[76:77], exec\ns_mov_b64 exec, 1")
            e(f"buffer_atomic_add v{TMP+1}, v{TMP}, s[{SRD_DBG}:{SRD_DBG+3}], s28 offen sc1")
            e("s_mov_b64 exec, s[76:77]")
            em.label("K2_NOATOM")
            e("s_nop 3")
        if sg == CHK0:
            e(f"s_lshl_b32 s28, s{S_QB}, 5\nv_mov_b32 v{TMP}, 0")
            tags["cnt"] = em.vmem(f"buffer_load_dword v{CNTV}, v{TMP}, s[{SRD_DBG}:{SRD_DBG+3}], s28 offen sc0 sc1")
        if sg == CHK1:
            e(f"v_readfirstlane_b32 s29, v{CNTV}\ns_cmp_ge_u32 s29, 32\ns_cbranch_scc1 K2_CNTOK")
            em.label("K2_CNTSPIN")
            e(f"s_sleep 1\nbuffer_load_dword v{CNTV}, v{TMP}, s[{SRD_DBG}:{SRD_DBG+3}], s28 offen sc0 sc1\ns_waitcnt vmcnt(0)")
            e(f"v_readfirstlane_b32 s29, v{CNTV}\ns_cmp_ge_u32 s29, 32\ns_cbranch_scc0 K2_CNTSPIN")
            em.label("K2_CNTOK")
            e(f"s_lshl_b32 s28, s{S_QB}, 8\ns_lshl_b32 s29, s{S_WAVE}, 6\ns_add_u32 s28, s28, s29\ns_lshl_b32 s28, s28, 3\ns_add_u32 s28, s28, {hex(WS_STAT)}")
            e(f"v_lshlrev_b32 v{CNTV}, 3, v3")
            for qs in range(4):
                tags["stat"] = em.vmem(f"buffer_load_dwordx2 {vr(STATV+2*qs,2)}, v{CNTV}, s[{SRD_WS}:{SRD_WS+3}], s28 offen offset:{qs*128} sc0 sc1")
        mf = []
        for t in range(8):
            for qs in range(4):
                acc = QACC + (t * 4 + qs) * 4
                b = AO + ((sg & 7) * 4 + qs) * 4
                mf.append(f"{MF} {vr(acc,4)}, {ar(aset(sg)+t*4,4)}, {ar(b,4)}, {'0' if sg == 0 else vr(acc,4)}")
            if t < 2:
                mf.append(f"{MF} {vr(CSACC+4*t,4)}, {ar(aset(sg)+t*4,4)}, {ar(AONE,4)}, {'0' if sg == 0 else vr(CSACC+4*t,4)}")
        n = len(mf)
        fill = [[] for _ in range(n + 1)]
        if sg + 1 < NK:
            if ((sg + 1) & 7) == 0:
                for u in range(4): e(f"v_add_u32 v{WQA+u}, 0x10000, v{WQA+u}")
            for k, t in enumerate(a_ld(sg + 1)): fill[(k * 3) // 2 + 1].append(("ds", t))
        vm = []
        if nw < NK: vm += wq_items(nw); nw += 1
        while nx < NK and nx <= sg + AHEAD:
            vm += xn_ld(nx); nx += 1
        if sg in kv_at: vm += kv_init(*kv_at[sg])
        for g in range(n):
            em.mfma(mf[g])
            for k, t in fill[g]: em.ds_load(t)
            if g % 2 == 1 and vm:
                take = [vm.pop(0)]
                while take[-1][0] == "salu" and vm: take.append(vm.pop(0))
                issue(take)
        issue(vm)
    e("s_nop 7")
    e(f"s_lshl_b32 s28, s{S_WAVE}, 7\ns_add_u32 s28, s28, {CSBUF}\nv_lshlrev_b32 v{CNTV}, 4, v4\nv_add_u32 v144, s28, v{CNTV}")
    e(f"ds_write_b128 v144, {vr(CSACC,4)}\nds_write_b128 v144, {vr(CSACC+4,4)} offset:64")
    em.wait_vm(tags["stat"])
    e("s_waitcnt lgkmcnt(0)\ns_barrier")
    for u in range(4):
        e(f"s_add_u32 s28, s{S_WAVE}, {u}\ns_and_b32 s28, s28, 3\ns_lshl_b32 s28, s28, 7\ns_add_u32 s28, s28, {CSBUF}\nv_add_u32 v{144+u}, s28, v{CNTV}")
    CS = [136, 148]
    for u in range(4):
        e(f"ds_read_b128 {vr(136,4)}, v{144+u}\nds_read_b128 {vr(140,4)}, v{144+u} offset:64\ns_waitcnt lgkmcnt(0)")
        for qs in range(4):
            st = vr(STATV + 2 * qs, 2)
            for half in range(2):
                acc = QACC + ((2 * u + half) * 4 + qs) * 4
                for k in range(2):
                    t = 148 + 2 * k
                    e(f"v_pk_mul_f32 {vr(t,2)}, {vr(136+4*half+2*k,2)}, {st} op_sel:[0,1] op_sel_hi:[1,1]")
                for k in range(2):
                    t = 148 + 2 * k
                    e(f"v_pk_fma_f32 {vr(acc+2*k,2)}, {vr(acc+2*k,2)}, {st}, {vr(t,2)} op_sel:[0,0,0] op_sel_hi:[1,0,1]")
                e(f"v_cvt_pk_bf16_f32 v{Qf(qs,u)+2*half}, v{acc}, v{acc+1}")
                e(f"v_cvt_pk_bf16_f32 v{Qf(qs,u)+2*half+1}, v{acc+2}, v{acc+3}")
    em.ds_done = em.ds - 1
    emit_wof_addr(em)

def emit_wof_addr(em):
    e = em.e
    e(f"s_lshr_b32 s{S_T}, s2, 1\ns_mul_i32 s{S_WOF}, s{S_T}, 36864\ns_and_b32 s{S_T2}, s2, 1\ns_mul_i32 s{S_T2}, s{S_T2}, 576\ns_add_u32 s{S_WOF}, s{S_WOF}, s{S_T2}")
    e(f"s_lshl_b32 s{S_T}, s{S_WAVE}, 6\nv_add_u32 v{TMP}, s{S_T}, v1")
    e(f"s_movk_i32 s{S_T2}, 1821")
    for k in range(5):
        e(f"v_add_u32 v{TMP+1}, {256*k}, v{TMP}")
        e(f"v_mul_lo_u32 v{TMP+2}, v{TMP+1}, s{S_T2}\nv_lshrrev_b32 v{TMP+2}, 16, v{TMP+2}")
        e(f"v_mul_u32_u24 v{TMP+3}, 36, v{TMP+2}\nv_sub_u32 v{TMP+3}, v{TMP+1}, v{TMP+3}")
        e(f"v_mul_u32_u24 v{TMP+2}, 0x480, v{TMP+2}\nv_lshl_add_u32 v{WOFV+k}, v{TMP+3}, 4, v{TMP+2}")
    e(f"v_mov_b32 v{WOFA}, v{TMP+8}")

def emit_wof_addr_fb(em):
    e = em.e
    if EARLY[0]: return
    e("v_bfe_u32 v9, v1, 2, 2\nv_and_b32 v10, 3, v1\nv_lshl_add_u32 v11, v4, 2, v9")
    e(f"v_mul_u32_u24 v16, 576, v11\nv_lshl_add_u32 v16, v10, 3, v16\nv_add_u32 v16, {hex(WOF_LDS)}, v16")
    e(f"s_lshl_b32 s{S_T}, s{S_WAVE}, 5\nv_add_u32 v{TMP+8}, s{S_T}, v16")
    emit_wof_addr(em)
```

```python
from asmlib import *
from moe import WS_YF, WS_RSEL
import struct
MF = "v_mfma_f32_16x16x32_bf16"
def f2u(f): return struct.unpack("<I", struct.pack("<f", f))[0]

ACC = 0
AF = 144
BF = 16
DWO = 80
TRA = 89
OFV = 90
L16 = 94
XV = 95
XNV = 96
YV = 97
E0 = 100
SRD_DBG, SRD_OF, SRD_WS, SRD_X, SRD_OUT = 8, 12, 16, 20, 24
S_WAVE, S_KH, S_NB, S_Q16, S_WOFF, S_BOFF, S_MB, S_T, S_T2, S_PAIR = 30, 31, 32, 33, 34, 35, 36, 37, 38, 39
S_KW, S_KB, S_WB, S_BB = 40, 41, 42, 43
S_IDX = 56
SLOT = 9216
WREG = 4 * SLOT

def k3(name="k3_oproj_kernel", moe=True, prof=False, rot=True, hotw=15, hotb=15, nodma=False, nob=False, cpf=True):
    em = Em(); e = em.e
    nst = [0]
    def stamp():
        if not prof: return
        k = nst[0]; nst[0] += 1
        e(f"s_memtime s[{64+4*k}:{65+4*k}]\ns_memrealtime s[{66+4*k}:{67+4*k}]\ns_waitcnt lgkmcnt(0)")
    kernel_head(em, name)
    e("s_cmp_ge_u32 s2, 256\ns_cbranch_scc1 K3_END")
    e(f"s_load_dwordx2 s[6:7], s[0:1], {KA_WS}")
    e(f"s_load_dwordx2 s[50:51], s[0:1], {KA_X}")
    e(f"s_load_dwordx2 s[52:53], s[0:1], {KA_OUT}")
    e(f"s_load_dwordx2 s[44:45], s[0:1], {KA_DBG}")
    e("v_and_b32 v1, 63, v0\nv_lshrrev_b32 v2, 6, v0\ns_nop 0")
    e(f"v_readfirstlane_b32 s{S_WAVE}, v2")
    e(f"s_and_b32 s{S_KH}, s2, 1\ns_bfe_u32 s3, s2, 0x20001")
    e(f"s_lshr_b32 s28, s2, 3\ns_and_b32 s{S_NB}, s28, 3\ns_lshr_b32 s28, s28, 2")
    e(f"s_lshl_b32 s{S_Q16}, s3, 5\ns_lshl_b32 s28, s28, 2\ns_add_u32 s{S_Q16}, s{S_Q16}, s28")
    e(f"s_lshr_b32 s{S_PAIR}, s2, 1")
    e(f"s_lshl_b32 s{S_T}, s{S_KH}, 6\ns_lshl_b32 s{S_T2}, s{S_WAVE}, 4\ns_add_u32 s{S_T}, s{S_T}, s{S_T2}")
    e(f"s_lshl_b32 s{S_BB}, s{S_T}, 10")
    e(f"s_mul_i32 s{S_WB}, s{S_T}, 36864\ns_mul_i32 s{S_T2}, s{S_NB}, 9216\ns_add_u32 s{S_WB}, s{S_WB}, s{S_T2}\ns_add_u32 s{S_WB}, s{S_WB}, {hex(WS_WOF)}")
    if rot:
        e(f"s_lshr_b32 s{S_KW}, s28, 1\ns_mul_i32 s{S_T2}, s{S_NB}, 5\ns_add_u32 s{S_KW}, s{S_KW}, s{S_T2}\ns_and_b32 s{S_KW}, s{S_KW}, 15")
    else:
        e(f"s_mov_b32 s{S_KW}, 0")
    e(f"s_mov_b32 s{S_KB}, s{S_KW}")
    e(f"s_mul_i32 s{S_WOFF}, s{S_KW}, 36864\ns_add_u32 s{S_WOFF}, s{S_WOFF}, s{S_WB}")
    e(f"s_lshl_b32 s{S_BOFF}, s{S_KB}, 10\ns_add_u32 s{S_BOFF}, s{S_BOFF}, s{S_BB}")
    e(f"s_mul_i32 s{S_MB}, s{S_WAVE}, {WREG}")
    e("v_and_b32 v3, 15, v1\nv_lshrrev_b32 v4, 4, v1")
    e(f"v_lshlrev_b32 v{L16}, 4, v1")
    for qs in range(4):
        e(f"s_add_u32 s{S_T}, s{S_Q16}, {qs}\ns_lshl_b32 s{S_T}, s{S_T}, 17\nv_add_u32 v{OFV+qs}, s{S_T}, v{L16}")
    if cpf:
        code_prefetch(em, name, "K3_CODE_END", 2, S_WAVE, 1, 100, 99, 92, "k3"); em.vm = 0
    e("s_waitcnt lgkmcnt(0)")
    srd(em, SRD_WS, 6, 7, WS_SIZE)
    if moe:
        e(f"s_add_u32 s54, s6, {hex(WS_MOE)}\ns_addc_u32 s55, s7, 0")
        e(f"s_load_dwordx8 s[{S_IDX}:{S_IDX+7}], s[54:55], 0")
    e(f"s_add_u32 s6, s6, {hex(WS_OF)}\ns_addc_u32 s7, s7, 0")
    srd(em, SRD_OF, 6, 7, 2048 * 4096 * 2)
    srd(em, SRD_X, 50, 51, 2048 * 1152)
    srd(em, SRD_OUT, 52, 53, 2048 * 1152)
    srd(em, SRD_DBG, 44, 45, 256)
    YR = 100
    YRA = 0
    if moe:
        e("s_cmp_lt_u32 s2, 36\ns_cbranch_scc0 K3_NOY1")
        e(f"s_lshl_b32 s46, s2, 2\ns_add_u32 s46, s46, s{S_WAVE}")
        e(f"s_lshl_b32 s47, s2, 9\ns_lshl_b32 s48, s{S_WAVE}, 7\ns_add_u32 s47, s47, s48")
        e(f"v_lshrrev_b32 v5, 3, v1\nv_mul_u32_u24 v5, 18432, v5\nv_and_b32 v6, 7, v1\nv_lshl_add_u32 v5, v6, 4, v5\nv_add_u32 v5, s47, v5")
        e(f"s_mov_b32 s48, {hex(WS_YP)}")
        for i in range(18):
            d = f"a[{YRA+4*i}:{YRA+4*i+3}]"
            e(f"buffer_load_dwordx4 {d}, v5, s[{SRD_WS}:{SRD_WS+3}], s48 offen")
            if i < 17: e(f"s_add_u32 s48, s48, {8*18432}")
        e(f"v_lshlrev_b32 v6, 2, v6\ns_mov_b32 s47, {hex(WS_RSEL)}")
        e(f"buffer_load_dword v{YR+36}, v6, s[{SRD_WS}:{SRD_WS+3}], s47 offen")
        em.label("K3_NOY1")
    stamp()
    tags = {}
    NK = 16
    def dma(t):
        r = []
        for N in range(9):
            d = AF + (t % 3) * 36 + N * 4
            pre = ""
            if N in (4, 8): r.append(("salu", f"s_add_u32 s{S_WOFF}, s{S_WOFF}, 4096"))
            r.append(("vmem", f"buffer_load_dwordx4 {ar(d,4)}, v{L16}, s[{SRD_WS}:{SRD_WS+3}], s{S_WOFF} offen offset:{(N&3)*1024}", ("wo", t)))
        r.append(("salu", f"s_add_u32 s{S_KW}, s{S_KW}, 1\ns_and_b32 s{S_KW}, s{S_KW}, {hotw}\ns_mul_i32 s{S_WOFF}, s{S_KW}, 36864\ns_add_u32 s{S_WOFF}, s{S_WOFF}, s{S_WB}"))
        return r
    def bld(t):
        r = []
        for qs in range(4):
            d = BF + ((t & 3) * 4 + qs) * 4
            r.append(("vmem", f"buffer_load_dwordx4 {vr(d,4)}, v{OFV+qs}, s[{SRD_OF}:{SRD_OF+3}], s{S_BOFF} offen", ("b", t)))
        r.append(("salu", f"s_add_u32 s{S_KB}, s{S_KB}, 1\ns_and_b32 s{S_KB}, s{S_KB}, {hotb}\ns_lshl_b32 s{S_BOFF}, s{S_KB}, 10\ns_add_u32 s{S_BOFF}, s{S_BOFF}, s{S_BB}"))
        return r
    def emit_items(items):
        prev = None
        for it in items:
            if it[0] == "vmem":
                if prev is not None and prev[0] == "salu" and "m0" in prev[1]: e("s_nop 0")
                idx = em.vmem(it[1]); tags[it[2]] = idx
            else: e(it[1])
            prev = it
    emit_items(bld(0)); emit_items(dma(0)); emit_items(bld(1)); emit_items(dma(1)); emit_items(bld(2))
    if moe:
        e("s_cmp_lt_u32 s2, 36\ns_cbranch_scc0 K3_NOY2")
        e(f"s_waitcnt vmcnt({em.vm})")
        for r in range(4): e(f"v_accvgpr_read_b32 v{YR+r}, a{YRA+r}")
        for i in range(1, 18):
            for r in range(4): e(f"v_accvgpr_read_b32 v{YR+4+r}, a{YRA+4*i+r}")
            for r in range(4): e(f"v_add_f32 v{YR+r}, v{YR+r}, v{YR+4+r}")
        for r in range(4):
            y, t = YR + r, YR + 4 + r
            e(f"s_nop 1\nv_add_f32_dpp v{t}, v{y}, v{y} row_ror:8 row_mask:0xf bank_mask:0xf")
            e(f"v_mov_b32 v{y}, v{t}\ns_nop 1\nv_permlane16_swap_b32 v{y}, v{t}\nv_add_f32 v{y}, v{y}, v{t}")
            e(f"v_mov_b32 v{t}, v{y}\ns_nop 1\nv_permlane32_swap_b32 v{y}, v{t}\nv_add_f32 v{y}, v{y}, v{t}")
            e(f"v_cvt_pk_bf16_f32 v{y}, v{y}, v{y}\nv_lshlrev_b32 v{y}, 16, v{y}\nv_mul_f32 v{y}, v{y}, v{YR+36}\nv_cvt_pk_bf16_f32 v{y}, v{y}, v{y}\nv_lshlrev_b32 v{y}, 16, v{y}")
        e(f"s_lshl_b32 s47, s2, 6\ns_lshl_b32 s48, s{S_WAVE}, 4\ns_add_u32 s47, s47, s48\ns_add_u32 s47, s47, {hex(WS_YF)}")
        e("v_and_b32 v6, 7, v1\nv_mul_u32_u24 v6, 2304, v6")
        e("s_mov_b64 s[48:49], exec\ns_mov_b64 exec, 0xff")
        e(f"buffer_store_dwordx4 {vr(YR,4)}, v6, s[{SRD_WS}:{SRD_WS+3}], s47 offen sc0 sc1")
        e("s_mov_b64 exec, s[48:49]")
        em.label("K3_NOY2")
    e(f"s_add_u32 s{S_Q16}, s{S_Q16}, s{S_WAVE}")
    e(f"s_mul_i32 s{S_T}, s{S_Q16}, {16*1152}\ns_mul_i32 s{S_T2}, s{S_NB}, 288\ns_add_u32 s{S_T}, s{S_T}, s{S_T2}")
    e(f"v_mul_u32_u24 v5, 0x480, v3\nv_lshl_add_u32 v5, v4, 3, v5\nv_add_u32 v{XV}, s{S_T}, v5")
    for t in range(NK):
        em.wait_vm(max(tags[("b", t)], tags[("wo", t)]))
        if moe and t == 6:
            e("s_cmp_lt_u32 s2, 36\ns_cbranch_scc0 K3_NOY3")
            e("v_mov_b32 v6, 0\nv_mov_b32 v7, 1\ns_mov_b64 s[48:49], exec\ns_mov_b64 exec, 1")
            e(f"buffer_atomic_add v7, v6, s[{SRD_DBG}:{SRD_DBG+3}], 0 offen sc1")
            e("s_mov_b64 exec, s[48:49]")
            em.label("K3_NOY3")
        mf = []
        for N in range(9):
            for qs in range(4):
                acc = ACC + (N * 4 + qs) * 4
                b = BF + ((t & 3) * 4 + qs) * 4
                mf.append(f"{MF} {ar(acc,4)}, {ar(AF+(t%3)*36+N*4,4)}, {vr(b,4)}, {'0' if t == 0 else ar(acc,4)}")
        vm = []
        if t + 2 < NK: vm += dma(t + 2)
        if t + 3 < NK: vm += bld(t + 3)
        for g in range(36):
            e(mf[g])
            if g % 2 == 1 and vm:
                take = [vm.pop(0)]
                while take[-1][0] == "salu" and vm: take.append(vm.pop(0))
                emit_items(take)
        emit_items(vm)
    stamp()
    e("s_nop 7\ns_nop 3")
    e(f"v_add_u32 v5, s{S_MB}, v{L16}")
    for w in range(4):
        e(f"s_cmp_eq_u32 s{S_WAVE}, {w}\ns_cbranch_scc0 K3_W{w}")
        for qs in range(4):
            if qs == w: continue
            for N in range(9):
                e(f"ds_write_b128 v5, {ar(ACC+(N*4+qs)*4,4)} offset:{(qs*9+N)*1024}")
        for N in range(9):
            for r in range(4):
                e(f"v_accvgpr_read_b32 v{E0+N*4+r}, a{ACC+(N*4+w)*4+r}")
        e("s_branch K3_WD")
        em.label(f"K3_W{w}")
    em.label("K3_WD")
    e("s_waitcnt lgkmcnt(0)\ns_barrier")
    e(f"s_mul_i32 s{S_T}, s{S_WAVE}, 9216")
    e(f"v_add_u32 v6, s{S_T}, v{L16}")
    T0 = E0 + 36
    for k in range(1, 4):
        e(f"s_add_u32 s{S_T}, s{S_WAVE}, {k}\ns_and_b32 s{S_T}, s{S_T}, 3\ns_mul_i32 s{S_T}, s{S_T}, {WREG}")
        e(f"v_add_u32 v7, s{S_T}, v6")
        for N in range(9):
            e(f"ds_read_b128 {vr(T0+N*4,4)}, v7 offset:{N*1024}")
        for N in range(9):
            e(f"s_waitcnt lgkmcnt({8-N})")
            for r in range(0, 4, 2):
                e(f"v_pk_add_f32 {vr(E0+N*4+r,2)}, {vr(E0+N*4+r,2)}, {vr(T0+N*4+r,2)}")
    stamp()
    e(f"s_lshl_b32 s{S_T}, s{S_PAIR}, 1")
    e(f"s_xor_b32 s{S_T2}, s{S_KH}, 1")
    e(f"s_add_u32 s44, s{S_T}, s{S_T2}\ns_lshl_b32 s44, s44, 2\ns_add_u32 s44, s44, s{S_WAVE}\ns_mul_i32 s44, s44, 5120\ns_add_u32 s44, s44, {hex(WS_PART)}")
    e(f"s_add_u32 s45, s{S_T}, s{S_KH}\ns_lshl_b32 s45, s45, 2\ns_add_u32 s45, s45, s{S_WAVE}\ns_mul_i32 s45, s45, 5120\ns_add_u32 s45, s45, {hex(WS_PART)}")
    def send(tiles):
        for k, N in enumerate(tiles):
            e(f"s_add_u32 s46, s44, {k*1024}")
            e(f"buffer_store_dwordx4 {vr(E0+N*4,4)}, v{L16}, s[{SRD_WS}:{SRD_WS+3}], s46 offen sc0 sc1")
    e(f"s_cmp_eq_u32 s{S_KH}, 0\ns_cbranch_scc0 K3_S1")
    send(range(5, 9))
    e("s_branch K3_S2")
    em.label("K3_S1")
    send(range(0, 5))
    em.label("K3_S2")
    XL = E0 + 80
    XN = XL + 10
    e(f"s_mul_i32 s47, s{S_KH}, 5")
    e(f"s_mul_i32 s48, s{S_NB}, 9\ns_add_u32 s48, s48, s47")
    for k in range(5):
        e(f"s_add_u32 s46, s47, {k}\ns_lshl_b32 s46, s46, 5")
        e(f"buffer_load_dwordx2 {vr(XL+2*k,2)}, v{XV}, s[{SRD_X}:{SRD_X+3}], s46 offen")
        e(f"s_add_u32 s46, s48, {k}\ns_and_b32 s49, s46, 1\ns_lshl_b32 s49, s49, 3\ns_lshr_b32 s46, s46, 1")
        e(f"s_mul_i32 s54, s{S_Q16}, 18\ns_add_u32 s46, s46, s54\ns_lshl_b32 s46, s46, 10\ns_add_u32 s46, s46, s49")
        if WS_XNF: e(f"s_add_u32 s46, s46, {hex(WS_XNF)}")
        e(f"buffer_load_dwordx2 {vr(XN+2*k,2)}, v{L16}, s[{SRD_WS}:{SRD_WS+3}], s46 offen")
    e("s_waitcnt vmcnt(0)\ns_barrier")
    e(f"s_cmp_eq_u32 s{S_WAVE}, 0\ns_cbranch_scc0 K3_F1")
    e(f"s_lshl_b32 s46, s2, 2\ns_add_u32 s46, s46, {hex(WS_FLAGS)}")
    e("v_mov_b32 v5, 0\nv_mov_b32 v6, 1")
    e(f"buffer_store_dword v6, v5, s[{SRD_WS}:{SRD_WS+3}], s46 offen sc0 sc1")
    e("s_xor_b32 s46, s46, 4")
    em.label("K3_POLL")
    e(f"buffer_load_dword v6, v5, s[{SRD_WS}:{SRD_WS+3}], s46 offen sc0 sc1")
    e("s_waitcnt vmcnt(0)")
    e("v_readfirstlane_b32 s49, v6")
    e("s_cmp_eq_u32 s49, 1\ns_cbranch_scc1 K3_F1\ns_sleep 1\ns_branch K3_POLL")
    em.label("K3_F1")
    e("s_barrier")
    stamp()
    T1 = T0
    for k in range(5):
        e(f"s_add_u32 s46, s45, {k*1024}")
        e(f"buffer_load_dwordx4 {vr(T1+k*4,4)}, v{L16}, s[{SRD_WS}:{SRD_WS+3}], s46 offen sc0 sc1")
    e(f"s_cmp_eq_u32 s{S_KH}, 0\ns_cbranch_scc1 K3_K0")
    for k in range(4):
        for r in range(4): e(f"v_mov_b32 v{E0+k*4+r}, v{E0+(5+k)*4+r}")
    em.label("K3_K0")
    YL = XN + 10
    if moe:
        for k in range(20): e(f"v_mov_b32 v{YL+k}, 0")
        e(f"s_lshl_b32 s46, s{S_Q16}, 4\nv_add_u32 v5, s46, v3\nv_mov_b32 v6, 8")
        for t in range(8):
            e(f"v_cmp_eq_u32 vcc, s{S_IDX+t}, v5\nv_mov_b32 v7, {t}\ns_nop 0\nv_cndmask_b32 v6, v6, v7, vcc")
        e("v_cmp_gt_u32 vcc, 8, v6\ns_cbranch_vccz K3_NOMOE")
        e("s_mov_b64 s[48:49], exec\ns_and_b64 exec, exec, vcc")
        e("v_mov_b32 v7, 0")
        em.label("K3_YPOLL")
        e(f"buffer_load_dword v5, v7, s[{SRD_DBG}:{SRD_DBG+3}], 0 offen sc0 sc1\ns_waitcnt vmcnt(0)")
        e("v_readfirstlane_b32 s46, v5\ns_cmp_ge_u32 s46, 144\ns_cbranch_scc1 K3_YOK\ns_sleep 2\ns_branch K3_YPOLL")
        em.label("K3_YOK")
        e(f"v_mul_u32_u24 v6, 2304, v6\nv_lshl_add_u32 v6, v4, 4, v6")
        e(f"s_mul_i32 s46, s{S_NB}, 576\ns_lshl_b32 s54, s47, 6\ns_add_u32 s46, s46, s54\ns_add_u32 s46, s46, {hex(WS_YF)}")
        for k in range(5):
            e(f"buffer_load_dwordx4 {vr(YL+4*k,4)}, v6, s[{SRD_WS}:{SRD_WS+3}], s46 offen offset:{k*64} sc0 sc1")
        e("s_mov_b64 exec, s[48:49]")
        em.label("K3_NOMOE")
    e("s_mov_b32 s54, 0xbfb8aa3b")
    e("s_mov_b32 s55, 0xffff0000")
    e("s_waitcnt vmcnt(0)")
    nk = 5
    for k in range(nk):
        if k == 4: e(f"s_cmp_eq_u32 s{S_KH}, 0\ns_cbranch_scc0 K3_FIN")
        a = E0 + k * 4; t = T1 + k * 4
        for r in range(0, 4, 2):
            e(f"v_pk_add_f32 {vr(a+r,2)}, {vr(a+r,2)}, {vr(t+r,2)}")
        U = T0 + 24
        e(f"v_cvt_pk_bf16_f32 v{U}, v{a}, v{a+1}\nv_cvt_pk_bf16_f32 v{U+1}, v{a+2}, v{a+3}")
        e(f"v_lshlrev_b32 v{a}, 16, v{U}\nv_and_b32 v{a+1}, s55, v{U}\nv_lshlrev_b32 v{a+2}, 16, v{U+1}\nv_and_b32 v{a+3}, s55, v{U+1}")
        e(f"v_lshlrev_b32 v{t}, 16, v{XN+2*k}\nv_and_b32 v{t+1}, s55, v{XN+2*k}\nv_lshlrev_b32 v{t+2}, 16, v{XN+2*k+1}\nv_and_b32 v{t+3}, s55, v{XN+2*k+1}")
        if moe:
            for r in range(4): e(f"v_add_f32 v{t+r}, v{t+r}, v{YL+4*k+r}")
            e(f"v_cvt_pk_bf16_f32 v{U}, v{t}, v{t+1}\nv_cvt_pk_bf16_f32 v{U+1}, v{t+2}, v{t+3}")
            e(f"v_lshlrev_b32 v{t}, 16, v{U}\nv_and_b32 v{t+1}, s55, v{U}\nv_lshlrev_b32 v{t+2}, 16, v{U+1}\nv_and_b32 v{t+3}, s55, v{U+1}")
        for r in range(4): e(f"v_mul_f32 v{U+2+r}, s54, v{t+r}")
        for r in range(4): e(f"v_exp_f32 v{U+2+r}, v{U+2+r}")
        e("s_nop 0")
        for r in range(4): e(f"v_add_f32 v{U+2+r}, 1.0, v{U+2+r}")
        for r in range(4): e(f"v_rcp_f32 v{U+2+r}, v{U+2+r}")
        e("s_nop 0")
        for r in range(4): e(f"v_mul_f32 v{t+r}, v{t+r}, v{U+2+r}")
        e(f"v_cvt_pk_bf16_f32 v{U}, v{t}, v{t+1}\nv_cvt_pk_bf16_f32 v{U+1}, v{t+2}, v{t+3}")
        e(f"v_lshlrev_b32 v{t}, 16, v{U}\nv_and_b32 v{t+1}, s55, v{U}\nv_lshlrev_b32 v{t+2}, 16, v{U+1}\nv_and_b32 v{t+3}, s55, v{U+1}")
        for r in range(4): e(f"v_mul_f32 v{a+r}, v{a+r}, v{t+r}")
        e(f"v_cvt_pk_bf16_f32 v{U}, v{a}, v{a+1}\nv_cvt_pk_bf16_f32 v{U+1}, v{a+2}, v{a+3}")
        e(f"v_lshlrev_b32 v{a}, 16, v{U}\nv_and_b32 v{a+1}, s55, v{U}\nv_lshlrev_b32 v{a+2}, 16, v{U+1}\nv_and_b32 v{a+3}, s55, v{U+1}")
        e(f"v_lshlrev_b32 v{t}, 16, v{XL+2*k}\nv_and_b32 v{t+1}, s55, v{XL+2*k}\nv_lshlrev_b32 v{t+2}, 16, v{XL+2*k+1}\nv_and_b32 v{t+3}, s55, v{XL+2*k+1}")
        for r in range(4): e(f"v_add_f32 v{a+r}, v{a+r}, v{t+r}")
        e(f"v_cvt_pk_bf16_f32 v{U+6+2*(k&1)}, v{a}, v{a+1}\nv_cvt_pk_bf16_f32 v{U+7+2*(k&1)}, v{a+2}, v{a+3}")
        e(f"s_add_u32 s46, s47, {k}\ns_lshl_b32 s46, s46, 5")
        e(f"buffer_store_dwordx2 {vr(U+6+2*(k&1),2)}, v{XV}, s[{SRD_OUT}:{SRD_OUT+3}], s46 offen")
    em.label("K3_FIN")
    if prof:
        e("s_waitcnt vmcnt(0)")
        stamp()
        e(f"s_lshl_b32 s46, s2, 2\ns_add_u32 s46, s46, s{S_WAVE}\ns_lshl_b32 s46, s46, 7\ns_add_u32 s46, s46, {hex(WS_PROF + 0x40000)}")
        e("v_mov_b32 v1, 0")
        for k in range(nst[0]):
            e(f"v_mov_b32 v2, s{64+4*k}\nv_mov_b32 v3, s{66+4*k}")
            e(f"buffer_store_dwordx2 v[2:3], v1, s[{SRD_WS}:{SRD_WS+3}], s46 offen offset:{8*k} sc0 sc1")
            e("s_nop 1")
        e("s_waitcnt vmcnt(0)")
    if prof:
        e(f"s_cmp_eq_u32 s2, 0\ns_cbranch_scc0 K3_END\ns_cmp_eq_u32 s{S_WAVE}, 0\ns_cbranch_scc0 K3_END")
        e(f"v_lshlrev_b32 v1, 3, v0\ns_mov_b32 s46, {hex(WS_PROF)}")
        e(f"buffer_load_dwordx2 v[2:3], v1, s[{SRD_WS}:{SRD_WS+3}], s46 offen sc0 sc1")
        e(f"s_mov_b32 s46, {hex(WS_PROF + 0x40000)}")
        e(f"buffer_load_dwordx2 v[4:5], v1, s[{SRD_WS}:{SRD_WS+3}], s46 offen sc0 sc1")
        e("s_waitcnt vmcnt(0)")
        e("v_readfirstlane_b32 s46, v3")
        e("v_subrev_u32 v3, s46, v3\nv_subrev_u32 v5, s46, v5")
        e("v_lshlrev_b32 v6, 2, v0\nv_add_u32 v7, 4, v6\nv_add_u32 v8, 32, v6")
        e("v_cmp_gt_u32 vcc, 7, v0\ns_and_saveexec_b64 s[48:49], vcc")
        e(f"buffer_store_dword v3, v7, s[{SRD_DBG}:{SRD_DBG+3}], 0 offen")
        e("s_mov_b64 exec, s[48:49]\nv_cmp_gt_u32 vcc, 5, v0\ns_and_saveexec_b64 s[48:49], vcc")
        e(f"buffer_store_dword v5, v8, s[{SRD_DBG}:{SRD_DBG+3}], 0 offen")
    em.label("K3_END")
    e("s_endpgm")
    em.label("K3_CODE_END")
    return em.text(), kernel_desc(name, 512, 96, 256), f"; @launch kernel={name} grid=(256,1,1) block=(256,1,1) lds={4*WREG}"
```

```python
from asmlib import *
from moe import WS_YF, WS_RSEL
import struct
MF = "v_mfma_f32_16x16x32_bf16"
WS_PART2 = 0x4000000
WS_FLAGS2 = WS_FLAGS
ACC = 0
AF = 72
YRA = 144
BF = 16
L16 = 112
OFV = 113
ARD = 115
XV = 116
E0 = 120
RC = 140
XL = 200
XN = 210
GG = 220
U = 240
SRD_DBG, SRD_OF, SRD_WS, SRD_X, SRD_OUT = 8, 12, 16, 20, 24
S_WAVE, S_KQ, S_NB, S_Q16, S_WOFF, S_BOFF, S_MB, S_T, S_T2, S_TILE = 30, 31, 32, 33, 34, 35, 36, 37, 38, 39
S_N0, S_N36 = 40, 41
S_IDX = 56
STAGE = 36864

def k3b(name="k3_oproj_kernel", moe=True, prof=False, cpf=True, xbf16=False, hota=False, hotb=False):
    em = Em(); e = em.e
    nst = [0]
    def stamp():
        if not prof: return
        k = nst[0]; nst[0] += 1
        e(f"s_memtime s[{64+4*k}:{65+4*k}]\ns_memrealtime s[{66+4*k}:{67+4*k}]\ns_waitcnt lgkmcnt(0)")
        em.ds_done = em.ds - 1
    kernel_head(em, name)
    e("s_cmp_ge_u32 s2, 256\ns_cbranch_scc1 K3_END")
    e(f"s_load_dwordx2 s[6:7], s[0:1], {KA_WS}")
    e(f"s_load_dwordx2 s[50:51], s[0:1], {KA_X}")
    e(f"s_load_dwordx2 s[52:53], s[0:1], {KA_OUT}")
    e(f"s_load_dwordx2 s[44:45], s[0:1], {KA_DBG}")
    e("v_and_b32 v1, 63, v0\nv_lshrrev_b32 v2, 6, v0\ns_nop 0")
    e(f"v_readfirstlane_b32 s{S_WAVE}, v2")
    e(f"s_and_b32 s{S_KQ}, s2, 1\ns_lshl_b32 s{S_KQ}, s{S_KQ}, 1\ns_bfe_u32 s28, s2, 0x10003\ns_add_u32 s{S_KQ}, s{S_KQ}, s28")
    e(f"s_bfe_u32 s{S_NB}, s2, 0x20004\ns_bfe_u32 s3, s2, 0x20001\ns_lshr_b32 s28, s2, 6")
    e(f"s_lshl_b32 s{S_TILE}, s3, 2\ns_add_u32 s{S_TILE}, s{S_TILE}, s28\ns_lshl_b32 s{S_TILE}, s{S_TILE}, 2\ns_add_u32 s{S_TILE}, s{S_TILE}, s{S_NB}")
    e(f"s_lshl_b32 s{S_Q16}, s3, 5\ns_lshl_b32 s28, s28, 3\ns_add_u32 s{S_Q16}, s{S_Q16}, s28\ns_lshl_b32 s28, s{S_WAVE}, 1\ns_add_u32 s{S_Q16}, s{S_Q16}, s28")
    e(f"s_lshl_b32 s{S_T}, s{S_KQ}, 5\ns_add_u32 s{S_T2}, s{S_T}, s{S_WAVE}\ns_mul_i32 s{S_WOFF}, s{S_T2}, 36864\ns_mul_i32 s{S_T2}, s{S_NB}, 9216\ns_add_u32 s{S_WOFF}, s{S_WOFF}, s{S_T2}\ns_add_u32 s{S_WOFF}, s{S_WOFF}, {hex(WS_WOF)}")
    e(f"s_lshl_b32 s{S_BOFF}, s{S_T}, 10")
    e(f"s_mul_i32 s{S_MB}, s{S_WAVE}, 9216")
    e("v_and_b32 v3, 15, v1\nv_lshrrev_b32 v4, 4, v1")
    e(f"v_lshlrev_b32 v{L16}, 4, v1\nv_mov_b32 v{ARD}, v{L16}")
    for q in range(2):
        e(f"s_add_u32 s{S_T}, s{S_Q16}, {q}\ns_lshl_b32 s{S_T}, s{S_T}, 17\nv_add_u32 v{OFV+q}, s{S_T}, v{L16}")
    if cpf:
        code_prefetch(em, name, "K3_CODE_END", 2, S_WAVE, 1, 252, 99, 92, "k3"); em.vm = 0
    e("s_waitcnt lgkmcnt(0)")
    srd(em, SRD_WS, 6, 7, WS_SIZE)
    if moe:
        e(f"s_add_u32 s54, s6, {hex(WS_MOE)}\ns_addc_u32 s55, s7, 0")
        e(f"s_load_dwordx8 s[{S_IDX}:{S_IDX+7}], s[54:55], 0")
    e(f"s_add_u32 s6, s6, {hex(WS_OF)}\ns_addc_u32 s7, s7, 0")
    srd(em, SRD_OF, 6, 7, 2048 * 4096 * 2)
    srd(em, SRD_X, 50, 51, 2048 * 1152)
    srd(em, SRD_OUT, 52, 53, 2048 * 1152)
    srd(em, SRD_DBG, 44, 45, 256)
    stamp()
    YR = 240
    if moe:
        e("s_cmp_lt_u32 s2, 36\ns_cbranch_scc0 K3_NOY1")
        e(f"s_lshl_b32 s47, s2, 9\ns_lshl_b32 s48, s{S_WAVE}, 7\ns_add_u32 s47, s47, s48")
        e(f"v_lshrrev_b32 v5, 3, v1\nv_mul_u32_u24 v5, 18432, v5\nv_and_b32 v6, 7, v1\nv_lshl_add_u32 v5, v6, 4, v5\nv_add_u32 v5, s47, v5")
        e(f"s_mov_b32 s48, {hex(WS_YP)}")
        for i in range(18):
            e(f"buffer_load_dwordx4 a[{YRA+4*i}:{YRA+4*i+3}], v5, s[{SRD_WS}:{SRD_WS+3}], s48 offen")
            if i < 17: e(f"s_add_u32 s48, s48, {8*18432}")
        e(f"v_lshlrev_b32 v6, 2, v6\ns_mov_b32 s47, {hex(WS_RSEL)}")
        e(f"buffer_load_dword v{YR+8}, v6, s[{SRD_WS}:{SRD_WS+3}], s47 offen")
        em.label("K3_NOY1")
    tags = {}
    def a_dma(st):
        r = []
        for i in range(9):
            if (i & 3) == 0:
                r.append(("salu", f"s_add_u32 m0, s{S_MB}, {(st&3)*STAGE + (i>>2)*4096}" + (f"\ns_add_u32 s{S_WOFF}, s{S_WOFF}, 4096" if i else "")))
            r.append(("vmem", f"buffer_load_dwordx4 v{L16}, s[{SRD_WS}:{SRD_WS+3}], s{S_WOFF} offen offset:{(i&3)*1024} lds", ("a", st)))
        r.append(("salu", f"s_add_u32 s{S_WOFF}, s{S_WOFF}, {4*36864 - 8192}" if not hota else f"s_sub_u32 s{S_WOFF}, s{S_WOFF}, 8192"))
        return r
    def b_ld(st):
        r = []
        for kk in range(4):
            for q in range(2):
                d = BF + ((st % 3) * 8 + kk * 2 + q) * 4
                r.append(("vmem", f"buffer_load_dwordx4 {vr(d,4)}, v{OFV+q}, s[{SRD_OF}:{SRD_OF+3}], s{S_BOFF} offen offset:{kk*1024}", ("b", st)))
        if not hotb: r.append(("salu", f"s_add_u32 s{S_BOFF}, s{S_BOFF}, 4096"))
        return r
    def emit_items(items):
        prev = None
        for it in items:
            if it[0] == "vmem":
                idx = em.vmem(it[1]); tags[it[2]] = idx
            else:
                e(it[1])
                if "m0" in it[1] and it[1].count("\n") == 0: e("s_nop 0")
            prev = it
    emit_items(a_dma(0)); emit_items(b_ld(0)); emit_items(a_dma(1)); emit_items(b_ld(1))
    if moe:
        e("s_cmp_lt_u32 s2, 36\ns_cbranch_scc0 K3_NOY2")
        e(f"s_waitcnt vmcnt({em.vm})")
        for r in range(4): e(f"v_accvgpr_read_b32 v{YR+r}, a{YRA+r}")
        for i in range(1, 18):
            for r in range(4): e(f"v_accvgpr_read_b32 v{YR+4+r}, a{YRA+4*i+r}")
            for r in range(4): e(f"v_add_f32 v{YR+r}, v{YR+r}, v{YR+4+r}")
        for r in range(4):
            y, t = YR + r, YR + 4 + r
            e(f"s_nop 1\nv_add_f32_dpp v{t}, v{y}, v{y} row_ror:8 row_mask:0xf bank_mask:0xf")
            e(f"v_mov_b32 v{y}, v{t}\ns_nop 1\nv_permlane16_swap_b32 v{y}, v{t}\nv_add_f32 v{y}, v{y}, v{t}")
            e(f"v_mov_b32 v{t}, v{y}\ns_nop 1\nv_permlane32_swap_b32 v{y}, v{t}\nv_add_f32 v{y}, v{y}, v{t}")
            e(f"v_cvt_pk_bf16_f32 v{y}, v{y}, v{y}\nv_lshlrev_b32 v{y}, 16, v{y}\nv_mul_f32 v{y}, v{y}, v{YR+8}\nv_cvt_pk_bf16_f32 v{y}, v{y}, v{y}\nv_lshlrev_b32 v{y}, 16, v{y}")
        e(f"s_lshl_b32 s47, s2, 6\ns_lshl_b32 s48, s{S_WAVE}, 4\ns_add_u32 s47, s47, s48\ns_add_u32 s47, s47, {hex(WS_YF)}")
        e("v_and_b32 v6, 7, v1\nv_mul_u32_u24 v6, 2304, v6")
        e("s_mov_b64 s[48:49], exec\ns_mov_b64 exec, 0xff")
        e(f"buffer_store_dwordx4 {vr(YR,4)}, v6, s[{SRD_WS}:{SRD_WS+3}], s47 offen sc0 sc1")
        e("s_mov_b64 exec, s[48:49]")
        em.label("K3_NOY2")
    emit_items(a_dma(2))
    e(f"s_lshr_b32 s{S_T}, s{S_KQ}, 1\ns_add_u32 s{S_Q16}, s{S_Q16}, s{S_T}")
    e(f"s_and_b32 s{S_N0}, s{S_KQ}, 1\ns_mul_i32 s{S_N0}, s{S_N0}, 5")
    e(f"s_mul_i32 s{S_N36}, s{S_NB}, 9\ns_add_u32 s{S_N36}, s{S_N36}, s{S_N0}")
    e(f"s_mul_i32 s{S_T}, s{S_Q16}, {16*1152}\ns_mul_i32 s{S_T2}, s{S_NB}, 288\ns_add_u32 s{S_T}, s{S_T}, s{S_T2}")
    e(f"v_mul_u32_u24 v5, 0x480, v3\nv_lshl_add_u32 v5, v4, 3, v5\nv_add_u32 v{XV}, s{S_T}, v5")
    def x_items():
        r = []
        for k in range(5):
            r.append(("vmem", f"s_add_u32 s46, s{S_N0}, {k}\ns_lshl_b32 s46, s46, 5\nbuffer_load_dwordx2 {vr(XL+2*k,2)}, v{XV}, s[{SRD_X}:{SRD_X+3}], s46 offen", ("x", k)))
            r.append(("vmem", f"s_add_u32 s46, s{S_N36}, {k}\ns_and_b32 s47, s46, 1\ns_lshl_b32 s47, s47, 3\ns_lshr_b32 s46, s46, 1\ns_mul_i32 s48, s{S_Q16}, 18\ns_add_u32 s46, s46, s48\ns_lshl_b32 s46, s46, 10\ns_add_u32 s46, s46, s47\n"
                      f"buffer_load_dwordx2 {vr(XN+2*k,2)}, v{L16}, s[{SRD_WS}:{SRD_WS+3}], s46 offen", ("x", k)))
        return r
    def a_rd(t):
        st, kk = t >> 2, t & 3
        return [f"ds_read_b128 {ar(AF+(t&1)*36+N*4,4)}, v{ARDS[st&3]} offset:{kk*9216 + N*1024}" for N in range(9)]
    ARDS = [ARD, 117, 118, 119]
    for k in range(1, 4): e(f"v_add_u32 v{ARDS[k]}, {k*STAGE}, v{ARD}")
    em.wait_vm(tags[("a", 0)])
    e("s_barrier")
    for t in a_rd(0): em.ds_load(t)
    NT = 32
    for t in range(NT):
        st, kk = t >> 2, t & 3
        if kk == 0:
            em.wait_vm(tags[("b", st)])
        if kk == 3 and st + 1 < 8:
            em.wait_vm(tags[("a", st + 1)])
            em.ds_all_done()
            e("s_barrier")
        if moe and t == 13:
            e("s_cmp_lt_u32 s2, 36\ns_cbranch_scc0 K3_NOY3")
            e("v_mov_b32 v6, 0\nv_mov_b32 v7, 1\ns_mov_b64 s[48:49], exec\ns_mov_b64 exec, 1")
            e(f"buffer_atomic_add v7, v6, s[{SRD_DBG}:{SRD_DBG+3}], 0 offen sc1")
            e("s_mov_b64 exec, s[48:49]")
            em.label("K3_NOY3")
            e("s_nop 3")
        mf = []
        for N in range(9):
            for q in range(2):
                acc = ACC + (q * 9 + N) * 4
                b = BF + ((st % 3) * 8 + kk * 2 + q) * 4
                mf.append(f"{MF} {ar(acc,4)}, {ar(AF+(t&1)*36+N*4,4)}, {vr(b,4)}, {'0' if t == 0 else ar(acc,4)}")
        rd = a_rd(t + 1) if t + 1 < NT else []
        vm = []
        if kk == 0 and st + 3 < 8: vm = a_dma(st + 3)
        if kk == 1 and st + 2 < 8: vm = b_ld(st + 2)
        if st == 6 and kk == 2: vm = x_items()
        for g in range(18):
            em.mfma(mf[g])
            if g % 2 == 0 and rd: em.ds_load(rd.pop(0))
            if g % 2 == 1 and vm:
                take = [vm.pop(0)]
                while take[-1][0] == "salu" and vm: take.append(vm.pop(0))
                emit_items(take)
        for x in rd: em.ds_load(x)
        emit_items(vm)
    stamp()
    e("s_nop 7")
    e(f"s_lshl_b32 s{S_T}, s{S_TILE}, 4\ns_add_u32 s{S_T}, s{S_T}, s{S_KQ}\ns_lshl_b32 s{S_T}, s{S_T}, 2\ns_add_u32 s{S_T}, s{S_T}, s{S_WAVE}\ns_mul_i32 s44, s{S_T}, 5120\ns_add_u32 s44, s44, {hex(WS_PART2)}")
    for p in range(4):
        q, n0, cnt = p >> 1, (p & 1) * 5, 5 - (p & 1)
        e(f"s_cmp_eq_u32 s{S_KQ}, {p}\ns_cbranch_scc1 K3_KEEP{p}")
        e(f"s_add_u32 s46, s44, {p*16*5120}")
        for k in range(cnt):
            if k == 4: e("s_add_u32 s46, s46, 4096")
            e(f"buffer_store_dwordx4 {ar(ACC+(q*9+n0+k)*4,4)}, v{L16}, s[{SRD_WS}:{SRD_WS+3}], s46 offen offset:{(k&3)*1024} sc0 sc1")
        e(f"s_branch K3_NEXT{p}")
        em.label(f"K3_KEEP{p}")
        for k in range(cnt):
            for r in range(4): e(f"v_accvgpr_read_b32 v{E0+4*k+r}, a{ACC+(q*9+n0+k)*4+r}")
        em.label(f"K3_NEXT{p}")
    e("s_mov_b32 s54, 0xbfb8aa3b\ns_mov_b32 s55, 0xffff0000")
    e("s_waitcnt vmcnt(13)")
    YL = RC
    if moe:
        for k in range(20): e(f"v_mov_b32 v{YL+k}, 0")
        e(f"s_lshl_b32 s46, s{S_Q16}, 4\nv_add_u32 v5, s46, v3\nv_mov_b32 v6, 8")
        for t in range(8):
            e(f"v_cmp_eq_u32 vcc, s{S_IDX+t}, v5\nv_mov_b32 v7, {t}\ns_nop 0\nv_cndmask_b32 v6, v6, v7, vcc")
        e("v_cmp_gt_u32 vcc, 8, v6\ns_cbranch_vccz K3_NOMOE")
        e("s_mov_b64 s[48:49], exec\ns_and_b64 exec, exec, vcc")
        e("v_mov_b32 v7, 0")
        em.label("K3_YPOLL")
        e(f"buffer_load_dword v5, v7, s[{SRD_DBG}:{SRD_DBG+3}], 0 offen sc0 sc1\ns_waitcnt vmcnt(0)")
        e("v_readfirstlane_b32 s46, v5\ns_cmp_ge_u32 s46, 144\ns_cbranch_scc1 K3_YOK\ns_sleep 2\ns_branch K3_YPOLL")
        em.label("K3_YOK")
        e(f"v_mul_u32_u24 v6, 2304, v6\nv_lshl_add_u32 v6, v4, 4, v6")
        e(f"s_mul_i32 s46, s{S_NB}, 576\ns_lshl_b32 s47, s{S_N0}, 6\ns_add_u32 s46, s46, s47\ns_add_u32 s46, s46, {hex(WS_YF)}")
        for k in range(5):
            e(f"buffer_load_dwordx4 {vr(YL+4*k,4)}, v6, s[{SRD_WS}:{SRD_WS+3}], s46 offen offset:{k*64} sc0 sc1")
        e("s_waitcnt vmcnt(0)")
        e("s_mov_b64 exec, s[48:49]")
        em.label("K3_NOMOE")
    for k in range(5):
        t = GG + 4 * k
        e(f"v_lshlrev_b32 v{t}, 16, v{XN+2*k}\nv_and_b32 v{t+1}, s55, v{XN+2*k}\nv_lshlrev_b32 v{t+2}, 16, v{XN+2*k+1}\nv_and_b32 v{t+3}, s55, v{XN+2*k+1}")
        if moe:
            for r in range(4): e(f"v_add_f32 v{t+r}, v{t+r}, v{YL+4*k+r}")
            e(f"v_cvt_pk_bf16_f32 v{U}, v{t}, v{t+1}\nv_cvt_pk_bf16_f32 v{U+1}, v{t+2}, v{t+3}")
            e(f"v_lshlrev_b32 v{t}, 16, v{U}\nv_and_b32 v{t+1}, s55, v{U}\nv_lshlrev_b32 v{t+2}, 16, v{U+1}\nv_and_b32 v{t+3}, s55, v{U+1}")
        for r in range(4): e(f"v_mul_f32 v{U+2+r}, s54, v{t+r}")
        for r in range(4): e(f"v_exp_f32 v{U+2+r}, v{U+2+r}")
        e("s_nop 0")
        for r in range(4): e(f"v_add_f32 v{U+2+r}, 1.0, v{U+2+r}")
        for r in range(4): e(f"v_rcp_f32 v{U+2+r}, v{U+2+r}")
        e("s_nop 0")
        for r in range(4): e(f"v_mul_f32 v{t+r}, v{t+r}, v{U+2+r}")
        e(f"v_cvt_pk_bf16_f32 v{U}, v{t}, v{t+1}\nv_cvt_pk_bf16_f32 v{U+1}, v{t+2}, v{t+3}")
        e(f"v_lshlrev_b32 v{t}, 16, v{U}\nv_and_b32 v{t+1}, s55, v{U}\nv_lshlrev_b32 v{t+2}, 16, v{U+1}\nv_and_b32 v{t+3}, s55, v{U+1}")
    e("s_waitcnt vmcnt(0)")
    e(f"s_lshl_b32 s46, s{S_TILE}, 2\ns_add_u32 s46, s46, s{S_KQ}\ns_lshl_b32 s46, s46, 2\ns_add_u32 s46, s46, s{S_WAVE}\ns_lshl_b32 s46, s46, 2\ns_add_u32 s46, s46, {hex(WS_FLAGS2)}")
    e("v_mov_b32 v5, 0\nv_mov_b32 v6, 1\ns_mov_b64 s[48:49], exec\ns_mov_b64 exec, 1")
    e(f"buffer_store_dword v6, v5, s[{SRD_WS}:{SRD_WS+3}], s46 offen sc0 sc1")
    e("s_mov_b64 exec, 15")
    e(f"s_lshl_b32 s46, s{S_TILE}, 6\ns_lshl_b32 s47, s{S_WAVE}, 2\ns_add_u32 s46, s46, s47\ns_add_u32 s46, s46, {hex(WS_FLAGS2)}\nv_lshlrev_b32 v5, 4, v1")
    em.label("K3_POLL")
    e(f"buffer_load_dword v6, v5, s[{SRD_WS}:{SRD_WS+3}], s46 offen sc0 sc1\ns_waitcnt vmcnt(0)")
    e("v_cmp_ne_u32 vcc, 1, v6\ns_cbranch_vccz K3_POLLED\ns_sleep 1\ns_branch K3_POLL")
    em.label("K3_POLLED")
    e("s_mov_b64 exec, s[48:49]")
    stamp()
    for i in range(1, 4):
        e(f"s_add_u32 s46, s{S_KQ}, {i}\ns_and_b32 s46, s46, 3\ns_lshl_b32 s47, s{S_TILE}, 2\ns_add_u32 s47, s47, s{S_KQ}\ns_lshl_b32 s47, s47, 2\ns_add_u32 s47, s47, s46\ns_lshl_b32 s47, s47, 2\ns_add_u32 s47, s47, s{S_WAVE}\ns_mul_i32 s47, s47, 5120\ns_add_u32 s47, s47, {hex(WS_PART2)}")
        for k in range(5):
            if k == 4: e("s_add_u32 s47, s47, 4096")
            e(f"buffer_load_dwordx4 {vr(RC+((i-1)*5+k)*4,4)}, v{L16}, s[{SRD_WS}:{SRD_WS+3}], s47 offen offset:{(k&3)*1024} sc0 sc1")
    stamp()
    for k in range(5):
        if k == 4: e(f"s_bitcmp1_b32 s{S_KQ}, 0\ns_cbranch_scc1 K3_FIN")
        a = E0 + 4 * k; g = GG + 4 * k
        e("s_waitcnt vmcnt(4)")
        for i in range(3):
            for r in range(0, 4, 2):
                e(f"v_pk_add_f32 {vr(a+r,2)}, {vr(a+r,2)}, {vr(RC+(i*5+k)*4+r,2)}")
        e(f"v_cvt_pk_bf16_f32 v{U}, v{a}, v{a+1}\nv_cvt_pk_bf16_f32 v{U+1}, v{a+2}, v{a+3}")
        e(f"v_lshlrev_b32 v{a}, 16, v{U}\nv_and_b32 v{a+1}, s55, v{U}\nv_lshlrev_b32 v{a+2}, 16, v{U+1}\nv_and_b32 v{a+3}, s55, v{U+1}")
        for r in range(4): e(f"v_mul_f32 v{a+r}, v{a+r}, v{g+r}")
        e(f"v_cvt_pk_bf16_f32 v{U}, v{a}, v{a+1}\nv_cvt_pk_bf16_f32 v{U+1}, v{a+2}, v{a+3}")
        e(f"v_lshlrev_b32 v{a}, 16, v{U}\nv_and_b32 v{a+1}, s55, v{U}\nv_lshlrev_b32 v{a+2}, 16, v{U+1}\nv_and_b32 v{a+3}, s55, v{U+1}")
        e(f"v_lshlrev_b32 v{g}, 16, v{XL+2*k}\nv_and_b32 v{g+1}, s55, v{XL+2*k}\nv_lshlrev_b32 v{g+2}, 16, v{XL+2*k+1}\nv_and_b32 v{g+3}, s55, v{XL+2*k+1}")
        for r in range(4): e(f"v_add_f32 v{a+r}, v{a+r}, v{g+r}")
        e(f"v_cvt_pk_bf16_f32 v{U+6+2*(k&1)}, v{a}, v{a+1}\nv_cvt_pk_bf16_f32 v{U+7+2*(k&1)}, v{a+2}, v{a+3}")
        e(f"s_add_u32 s46, s{S_N0}, {k}\ns_lshl_b32 s46, s46, 5")
        e(f"buffer_store_dwordx2 {vr(U+6+2*(k&1),2)}, v{XV}, s[{SRD_OUT}:{SRD_OUT+3}], s46 offen")
    em.label("K3_FIN")
    if prof:
        e("s_waitcnt vmcnt(0)")
        stamp()
        e(f"s_lshl_b32 s46, s2, 2\ns_add_u32 s46, s46, s{S_WAVE}\ns_lshl_b32 s46, s46, 7\ns_add_u32 s46, s46, {hex(WS_PROF + 0x40000)}")
        e("v_mov_b32 v1, 0")
        for k in range(nst[0]):
            e(f"v_mov_b32 v2, s{64+4*k}\nv_mov_b32 v3, s{66+4*k}")
            e(f"buffer_store_dwordx2 v[2:3], v1, s[{SRD_WS}:{SRD_WS+3}], s46 offen offset:{8*k}")
            e("s_nop 1")
    em.label("K3_END")
    e("s_endpgm")
    em.label("K3_CODE_END")
    return em.text(), kernel_desc(name, 512, 96, 256), f"; @launch kernel={name} grid=(256,1,1) block=(256,1,1) lds={4*STAGE}"
```

```python
from asmlib import *
from moe import WS_YF, WS_RSEL, WS_IDX
import k2 as K
from k2 import SRD_WS, SRD_OF, S_WAVE, S_T, S_T2, S_HEAD, S_QB
MF = "v_mfma_f32_16x16x32_bf16"
WS_PART2 = 0x4000000
WS_FLAGS2 = WS_FLAGS
SRD_DBG = 68
SRD_X, SRD_OUT = 56, 60
WS_CNT = WS_FLAGS + 0x1000
C_WOF, C_Y, C_YRED = WS_CNT + 0 * 128, WS_CNT + 1 * 128, WS_CNT + 2 * 128
WS_OFLAG = WS_FLAGS + 0x2000
ACC = 0; AF = 72; YRA = 144
BF = 16; L16 = 112; OFV = 113; ARDS = [115, 117, 118, 119]; XV = 116
E0 = 120; RC = 140; XL = 200; XN = 210; GG = 220; U = 240
P_KQ, P_NB, P_Q16, P_WOFF, P_BOFF, P_MB, P_TILE, P_N0, P_N36, P_OC = 28, 29, 30, 31, 32, 33, 34, 35, 36, 39
P_OD = 47
P_IDX = 72
STAGE = 36864
SC = "sc0 sc1"
LOCAL = [False]
SST = ["sc0 sc1"]
WBL = [0]
XB16 = [True]
YMODE = ['main']
YT0V = [220]
NOYP = [False]
YT0 = 220
Y3_0 = 144
WS_YF3 = WS_MOE + 0xA800 if False else 0x2400000
YTGT = [432]
YTS = [14, 18, 24, 30]

def early(em):
    e = em.e
    e(f"s_lshl_b32 s{P_OC}, s{S_QB}, 2\ns_add_u32 s{P_OC}, s{P_OC}, s{S_WAVE}\ns_lshl_b32 s{P_OC}, s{P_OC}, 5\ns_add_u32 s{P_OC}, s{P_OC}, s{S_HEAD}\ns_lshl_b32 s{P_OC}, s{P_OC}, 2\ns_add_u32 s{P_OC}, s{P_OC}, {hex(WS_OFLAG)}")
    e(f"s_load_dwordx2 s[52:53], s[0:1], {KA_X}\ns_load_dwordx2 s[54:55], s[0:1], {KA_OUT}")

def oflag_set(em, vt=5):
    e = em.e
    e(f"v_mov_b32 v{vt}, 0\nv_mov_b32 v{vt+1}, 1\ns_mov_b64 exec, 1")
    e(f"buffer_store_dword v{vt+1}, v{vt}, s[{SRD_WS}:{SRD_WS+3}], s{P_OC} offen {SST[0]}")
    if WBL[0] & 1: e("buffer_wbl2 sc1")
    e("s_mov_b64 exec, -1")

OSLEEP = [4]
OFV8 = 253
def oflag_load(em):
    return em.vmem(f"buffer_load_dword v{OFV8+1}, v{OFV8}, s[{SRD_WS}:{SRD_WS+3}], s{P_OD} offen {SC}")
def oflag_need(em, upto, lab, pos=None):
    e = em.e
    if pos is not None: e(f"s_waitcnt vmcnt({min(em.vm - 1 - pos, 63)})")
    m = (1 << (upto + 1)) - 1
    e(f"v_cmp_ne_u32 vcc, 1, v{OFV8+1}\ns_and_b32 s48, vcc_lo, {m}\ns_cbranch_scc0 {lab}_OK")
    em.label(lab)
    e(f"s_sleep {OSLEEP[0]}\nbuffer_load_dword v{OFV8+1}, v{OFV8}, s[{SRD_WS}:{SRD_WS+3}], s{P_OD} offen {SC}\ns_waitcnt vmcnt(0)")
    e(f"v_cmp_ne_u32 vcc, 1, v{OFV8+1}\ns_and_b32 s48, vcc_lo, {m}\ns_cbranch_scc1 {lab}")
    em.label(lab + "_OK")

def setup(em):
    e = em.e
    if LOCAL[0]:
        e(f"s_lshr_b32 s{P_KQ}, s2, 6\ns_bfe_u32 s{P_NB}, s2, 0x20003\ns_bfe_u32 s49, s2, 0x20001")
        e(f"s_and_b32 s48, s2, 1\ns_lshl_b32 s48, s48, 1\ns_bfe_u32 s{P_TILE}, s2, 0x10005\ns_add_u32 s48, s48, s{P_TILE}")
    else:
        e(f"s_and_b32 s{P_KQ}, s2, 1\ns_lshl_b32 s{P_KQ}, s{P_KQ}, 1\ns_bfe_u32 s48, s2, 0x10003\ns_add_u32 s{P_KQ}, s{P_KQ}, s48")
        e(f"s_bfe_u32 s{P_NB}, s2, 0x20004\ns_bfe_u32 s49, s2, 0x20001\ns_lshr_b32 s48, s2, 6")
    e(f"s_lshl_b32 s{P_TILE}, s49, 2\ns_add_u32 s{P_TILE}, s{P_TILE}, s48\ns_lshl_b32 s{P_TILE}, s{P_TILE}, 2\ns_add_u32 s{P_TILE}, s{P_TILE}, s{P_NB}")
    e(f"s_lshl_b32 s{P_Q16}, s49, 5\ns_lshl_b32 s48, s48, 3\ns_add_u32 s{P_Q16}, s{P_Q16}, s48\ns_lshl_b32 s48, s{S_WAVE}, 1\ns_add_u32 s{P_Q16}, s{P_Q16}, s48")
    e(f"s_lshl_b32 s{S_T}, s{P_KQ}, 5\ns_add_u32 s{S_T2}, s{S_T}, s{S_WAVE}\ns_mul_i32 s{P_WOFF}, s{S_T2}, 36864\ns_mul_i32 s{S_T2}, s{P_NB}, 9216\ns_add_u32 s{P_WOFF}, s{P_WOFF}, s{S_T2}\ns_add_u32 s{P_WOFF}, s{P_WOFF}, {hex(WS_WOF)}")
    e(f"s_lshl_b32 s{P_BOFF}, s{S_T}, 10")
    e(f"s_mul_i32 s{P_MB}, s{S_WAVE}, 9216")
    e(f"v_lshlrev_b32 v{L16}, 4, v1\nv_mov_b32 v{ARDS[0]}, v{L16}")
    for k in range(1, 4): e(f"v_add_u32 v{ARDS[k]}, {k*STAGE}, v{ARDS[0]}")
    for q in range(2):
        e(f"s_add_u32 s{S_T}, s{P_Q16}, {q}\ns_lshl_b32 s{S_T}, s{S_T}, 17\nv_add_u32 v{OFV+q}, s{S_T}, v{L16}")
    e(f"s_lshr_b32 s49, s{P_Q16}, 2\ns_lshl_b32 s49, s49, 5\ns_lshl_b32 s48, s{P_KQ}, 3\ns_add_u32 s49, s49, s48\ns_lshl_b32 s49, s49, 2\ns_add_u32 s{P_OD}, s49, {hex(WS_OFLAG)}")
    e(f"v_and_b32 v{OFV8}, 7, v1\nv_lshlrev_b32 v{OFV8}, 2, v{OFV8}")
    e("s_waitcnt lgkmcnt(0)")
    em.ds_done = em.ds - 1
    srd(em, SRD_X, 52, 53, 2048 * 1152)
    srd(em, SRD_OUT, 54, 55, 2048 * 1152)

TAG = {}
def a_dma(st):
    r = []
    for i in range(9):
        if (i & 3) == 0:
            r.append(("salu", f"s_add_u32 m0, s{P_MB}, {(st&3)*STAGE + (i>>2)*4096}" + (f"\ns_add_u32 s{P_WOFF}, s{P_WOFF}, 4096" if i else "")))
        r.append(("vmem", f"buffer_load_dwordx4 v{L16}, s[{SRD_WS}:{SRD_WS+3}], s{P_WOFF} offen offset:{(i&3)*1024} {SC} lds", ("a", st)))
    r.append(("salu", f"s_add_u32 s{P_WOFF}, s{P_WOFF}, {4*36864 - 8192}"))
    return r
def b_ld(st):
    r = []
    for kk in range(4):
        for q in range(2):
            d = BF + ((st % 3) * 8 + kk * 2 + q) * 4
            r.append(("vmem", f"buffer_load_dwordx4 {vr(d,4)}, v{OFV+q}, s[{SRD_OF}:{SRD_OF+3}], s{P_BOFF} offen offset:{kk*1024} {SC}", ("b", st)))
    r.append(("salu", f"s_add_u32 s{P_BOFF}, s{P_BOFF}, 4096"))
    return r
def emit_items(em, items):
    for it in items:
        if it[0] == "vmem":
            TAG[it[2]] = em.vmem(it[1])
        else:
            em.e(it[1])
            if "m0" in it[1] and it[1].count("\n") == 0: em.e("s_nop 0")

def poll_ge(em, off_s, target, lab, vt=5, barrier=True, sleep=2):
    e = em.e
    if barrier: e(f"s_cmp_eq_u32 s{S_WAVE}, 0\ns_cbranch_scc0 {lab}_SKIP")
    e(f"v_mov_b32 v{vt}, 0\ns_mov_b64 exec, 1")
    em.label(lab)
    e(f"buffer_load_dword v{vt+1}, v{vt}, s[{SRD_WS}:{SRD_WS+3}], {off_s} offen {SC}\ns_waitcnt vmcnt(0)")
    e(f"v_readfirstlane_b32 s48, v{vt+1}\ns_cmp_ge_u32 s48, {target}\ns_cbranch_scc1 {lab}_OK\ns_sleep {sleep}\ns_branch {lab}")
    em.label(lab + "_OK")
    e("s_mov_b64 exec, -1")
    if barrier:
        em.label(lab + "_SKIP")
        e("s_barrier")

def atomic_inc(em, off, lab, vt=5, st=48):
    e = em.e
    e(f"s_cmp_eq_u32 s{S_WAVE}, 0\ns_cbranch_scc0 {lab}")
    e(f"v_mov_b32 v{vt}, 0\nv_mov_b32 v{vt+1}, 1\ns_mov_b64 exec, 1")
    if not isinstance(off, str):
        e(f"s_mov_b32 s{st}, {hex(off)}"); off = f"s{st}"
    e(f"buffer_atomic_add v{vt+1}, v{vt}, s[{SRD_WS}:{SRD_WS+3}], {off} offen sc1")
    e("s_mov_b64 exec, -1")
    em.label(lab)

def ytask(em):
    e = em.e
    YR = 240
    e(f"s_cmp_ge_u32 s2, {YT0V[0]}\ns_cbranch_scc0 K3_NOY")
    e(f"s_mov_b32 s49, {hex(C_Y)}")
    poll_ge(em, "s49", 144, "K3_YCNT", barrier=True, sleep=8)
    e(f"s_sub_u32 s52, s2, {YT0}\ns_lshl_b32 s49, s52, 9\ns_lshl_b32 s48, s{S_WAVE}, 7\ns_add_u32 s49, s49, s48")
    e("v_lshrrev_b32 v5, 3, v1\nv_mul_u32_u24 v5, 18432, v5\nv_and_b32 v6, 7, v1\nv_lshl_add_u32 v5, v6, 4, v5\nv_add_u32 v5, s49, v5")
    e(f"s_mov_b32 s48, {hex(WS_YP)}")
    for i in range(18):
        e(f"buffer_load_dwordx4 a[{YRA+4*i}:{YRA+4*i+3}], v5, s[{SRD_WS}:{SRD_WS+3}], s48 offen {SC}")
        if i < 17: e(f"s_add_u32 s48, s48, {8*18432}")
    e(f"v_lshlrev_b32 v6, 2, v6\ns_mov_b32 s48, {hex(WS_RSEL)}")
    e(f"buffer_load_dword v{YR+8}, v6, s[{SRD_WS}:{SRD_WS+3}], s48 offen {SC}")
    for i in range(18):
        e(f"s_waitcnt vmcnt({18 - i})" if i < 17 else "s_waitcnt vmcnt(0)")
        if i == 0:
            for r in range(4): e(f"v_accvgpr_read_b32 v{YR+r}, a{YRA+r}")
        else:
            for r in range(4): e(f"v_accvgpr_read_b32 v{YR+4+r}, a{YRA+4*i+r}")
            for r in range(4): e(f"v_add_f32 v{YR+r}, v{YR+r}, v{YR+4+r}")
    for r in range(4):
        y, tt = YR + r, YR + 4 + r
        e(f"s_nop 1\nv_add_f32_dpp v{tt}, v{y}, v{y} row_ror:8 row_mask:0xf bank_mask:0xf")
        e(f"v_mov_b32 v{y}, v{tt}\ns_nop 1\nv_permlane16_swap_b32 v{y}, v{tt}\nv_add_f32 v{y}, v{y}, v{tt}")
        e(f"v_mov_b32 v{tt}, v{y}\ns_nop 1\nv_permlane32_swap_b32 v{y}, v{tt}\nv_add_f32 v{y}, v{y}, v{tt}")
        e(f"v_cvt_pk_bf16_f32 v{y}, v{y}, v{y}\nv_lshlrev_b32 v{y}, 16, v{y}\nv_mul_f32 v{y}, v{y}, v{YR+8}\nv_cvt_pk_bf16_f32 v{y}, v{y}, v{y}\nv_lshlrev_b32 v{y}, 16, v{y}")
    e(f"s_sub_u32 s52, s2, {YT0}\ns_lshl_b32 s49, s52, 6\ns_lshl_b32 s48, s{S_WAVE}, 4\ns_add_u32 s49, s49, s48\ns_add_u32 s49, s49, {hex(WS_YF)}")
    e("v_and_b32 v6, 7, v1\nv_mul_u32_u24 v6, 2304, v6")
    e("s_mov_b64 exec, 0xff")
    e(f"buffer_store_dwordx4 {vr(YR,4)}, v6, s[{SRD_WS}:{SRD_WS+3}], s49 offen {SC}")
    e("s_waitcnt vmcnt(0)")
    e("v_mov_b32 v6, 0\nv_mov_b32 v7, 1\ns_mov_b64 exec, 1")
    e(f"s_mov_b32 s48, {hex(C_YRED)}")
    e(f"buffer_atomic_add v7, v6, s[{SRD_WS}:{SRD_WS+3}], s48 offen sc1")
    e("s_mov_b64 exec, -1")
    em.label("K3_NOY")

def main(em, stamp):
    e = em.e
    TAG.clear(); em.vm = 43
    TAG[("a", 0)] = 8; TAG[("a", 1)] = 17; TAG[("a", 2)] = 26; TAG[("b", 0)] = 34; TAG[("b", 1)] = 42
    YR = 240
    e(f"s_lshr_b32 s{S_T}, s{P_KQ}, 1\ns_add_u32 s{P_Q16}, s{P_Q16}, s{S_T}")
    e(f"s_and_b32 s{P_N0}, s{P_KQ}, 1\ns_mul_i32 s{P_N0}, s{P_N0}, 5")
    e(f"s_mul_i32 s{P_N36}, s{P_NB}, 9\ns_add_u32 s{P_N36}, s{P_N36}, s{P_N0}")
    e(f"s_mul_i32 s{S_T}, s{P_Q16}, {16*1152}\ns_mul_i32 s{S_T2}, s{P_NB}, 288\ns_add_u32 s{S_T}, s{S_T}, s{S_T2}")
    e(f"v_mul_u32_u24 v5, 0x480, v3\nv_lshl_add_u32 v5, v4, 3, v5\nv_add_u32 v{XV}, s{S_T}, v5")
    def x_items():
        r = []
        for k in range(5):
            r.append(("vmem", f"s_add_u32 s48, s{P_N0}, {k}\ns_lshl_b32 s48, s48, 5\nbuffer_load_dwordx2 {vr(XL+2*k,2)}, v{XV}, s[{SRD_X}:{SRD_X+3}], s48 offen", ("x", k)))
            r.append(("vmem", f"s_add_u32 s48, s{P_N36}, {k}\ns_and_b32 s49, s48, 1\ns_lshl_b32 s49, s49, 3\ns_lshr_b32 s48, s48, 1\ns_mul_i32 s52, s{P_Q16}, 18\ns_add_u32 s48, s48, s52\ns_lshl_b32 s48, s48, 10\ns_add_u32 s48, s48, s49\n"
                      f"buffer_load_dwordx2 {vr(XN+2*k,2)}, v{L16}, s[{SRD_WS}:{SRD_WS+3}], s48 offen {SC}", ("x", k)))
        r.append(("vmem", f"v_and_b32 v5, 7, v1\nv_lshlrev_b32 v5, 2, v5\ns_mov_b32 s48, {hex(WS_IDX)}\nbuffer_load_dword v{U+11}, v5, s[{SRD_WS}:{SRD_WS+3}], s48 offen {SC}", ("x", 9)))
        return r
    def a_rd(t):
        st, kk = t >> 2, t & 3
        return [f"ds_read_b128 {ar(AF+(t&1)*36+N*4,4)}, v{ARDS[st&3]} offset:{kk*9216 + N*1024}" for N in range(9)]
    em.wait_vm(TAG[("a", 0)])
    e("s_barrier")
    em.ldmap.clear()
    for t in a_rd(0): em.ds_load(t)
    NT = 32
    isy = f"s_cmp_ge_u32 s2, {YT0V[0]}\ns_cbranch_scc0 "
    for t in range(NT):
        st, kk = t >> 2, t & 3
        if kk == 0:
            em.wait_vm(TAG[("b", st)])
            if t == 0: stamp(em)
        if kk == 3 and st + 1 < 8:
            em.wait_vm(TAG[("a", st + 1)])
            em.ds_all_done()
            e("s_barrier")
        if YMODE[0] == "main":
            isy = f"s_sub_u32 s52, s2, {Y3_0}\ns_cmp_lt_u32 s52, {108 if YT0V[0] < 1000 else 0}\ns_cbranch_scc0 "
            dec = "s_mul_i32 s49, s52, 1821\ns_lshr_b32 s49, s49, 16\ns_mul_i32 s48, s49, 36\ns_sub_u32 s52, s52, s48"
            YR = 240
            if t == YTS[0]:
                e(isy + "K3_NOY0")
                e(f"v_mov_b32 v5, 0\ns_mov_b32 s49, {hex(C_Y)}\nbuffer_load_dword v252, v5, s[{SRD_WS}:{SRD_WS+3}], s49 offen {SC}")
                em.label("K3_NOY0")
                ypos0 = em.vm
            if t == YTS[1]:
                e(isy + "K3_NOY1")
                e(f"s_waitcnt vmcnt({min(em.vm - ypos0, 63)})")
                e("v_readfirstlane_b32 s48, v252\ns_cmp_ge_u32 s48, 144\ns_cbranch_scc1 K3_YC_OK")
                e(f"s_mov_b32 s49, {hex(C_Y)}")
                poll_ge(em, "s49", 144, "K3_YCNT", barrier=False, sleep=8)
                em.label("K3_YC_OK")
                e(dec)
                e(f"s_mul_i32 s49, s49, {48*18432}\ns_lshl_b32 s52, s52, 9\ns_add_u32 s49, s49, s52\ns_lshl_b32 s48, s{S_WAVE}, 7\ns_add_u32 s49, s49, s48")
                e("v_lshrrev_b32 v5, 3, v1\nv_mul_u32_u24 v5, 18432, v5\nv_and_b32 v6, 7, v1\nv_lshl_add_u32 v5, v6, 4, v5\nv_add_u32 v5, s49, v5")
                e(f"s_mov_b32 s48, {hex(WS_YP)}")
                for i in range(6):
                    e(f"buffer_load_dwordx4 a[{YRA+4*i}:{YRA+4*i+3}], v5, s[{SRD_WS}:{SRD_WS+3}], s48 offen {SC}")
                    if i < 5: e(f"s_add_u32 s48, s48, {8*18432}")
                em.label("K3_NOY1")
                e("s_nop 3")
                ypos = em.vm
            if t == YTS[2]:
                e(isy + "K3_NOY2")
                e(f"s_waitcnt vmcnt({min(em.vm - ypos, 63)})")
                for r in range(4): e(f"v_accvgpr_read_b32 v{YR+r}, a{YRA+r}")
                for i in range(1, 6):
                    for r in range(4): e(f"v_accvgpr_read_b32 v{YR+4+r}, a{YRA+4*i+r}")
                    for r in range(4): e(f"v_add_f32 v{YR+r}, v{YR+r}, v{YR+4+r}")
                for r in range(4):
                    y, tt = YR + r, YR + 4 + r
                    e(f"s_nop 1\nv_add_f32_dpp v{tt}, v{y}, v{y} row_ror:8 row_mask:0xf bank_mask:0xf")
                    e(f"v_mov_b32 v{y}, v{tt}\ns_nop 1\nv_permlane16_swap_b32 v{y}, v{tt}\nv_add_f32 v{y}, v{y}, v{tt}")
                    e(f"v_mov_b32 v{tt}, v{y}\ns_nop 1\nv_permlane32_swap_b32 v{y}, v{tt}\nv_add_f32 v{y}, v{y}, v{tt}")
                e(dec)
                e(f"s_mul_i32 s49, s49, {8*2304}\ns_lshl_b32 s52, s52, 6\ns_add_u32 s49, s49, s52\ns_lshl_b32 s48, s{S_WAVE}, 4\ns_add_u32 s49, s49, s48\ns_add_u32 s49, s49, {hex(WS_YF3)}")
                e("v_and_b32 v6, 7, v1\nv_mul_u32_u24 v6, 2304, v6")
                e("s_mov_b64 exec, 0xff")
                e(f"buffer_store_dwordx4 {vr(YR,4)}, v6, s[{SRD_WS}:{SRD_WS+3}], s49 offen {SC}")
                e("s_mov_b64 exec, -1")
                em.label("K3_NOY2")
                e("s_nop 3")
                ypos2 = em.vm
            if t == YTS[3]:
                e(isy + "K3_NOY3")
                e(f"s_waitcnt vmcnt({min(em.vm - ypos2, 63)})")
                e(f"v_mov_b32 v6, 0\nv_mov_b32 v7, 1\ns_mov_b64 exec, 1\ns_mov_b32 s48, {hex(C_YRED)}")
                e(f"buffer_atomic_add v7, v6, s[{SRD_WS}:{SRD_WS+3}], s48 offen sc1")
                e("s_mov_b64 exec, -1")
                em.label("K3_NOY3")
                e("s_nop 3")
        mf = []
        for N in range(9):
            for q in range(2):
                acc = ACC + (q * 9 + N) * 4
                b = BF + ((st % 3) * 8 + kk * 2 + q) * 4
                mf.append(f"{MF} {ar(acc,4)}, {ar(AF+(t&1)*36+N*4,4)}, {vr(b,4)}, {'0' if t == 0 else ar(acc,4)}")
        rd = a_rd(t + 1) if t + 1 < NT else []
        vm = []
        if kk == 0 and st + 3 < 8: vm = a_dma(st + 3)
        if kk == 1 and st + 2 < 8:
            oflag_need(em, st + 2, f"K3_OF{st}", pos=TAG.get(("of", st)))
            vm = b_ld(st + 2)
        if kk == 2 and st + 3 < 8:
            TAG[("of", st + 1)] = oflag_load(em)
        if st == 6 and kk == 2: vm = x_items()
        for g in range(18):
            em.mfma(mf[g])
            if g % 2 == 0 and rd: em.ds_load(rd.pop(0))
            if g % 2 == 1 and vm:
                take = [vm.pop(0)]
                while take[-1][0] == "salu" and vm: take.append(vm.pop(0))
                emit_items(em, take)
        for x in rd: em.ds_load(x)
        emit_items(em, vm)
    stamp(em)
    e("s_nop 7")
    L8 = 252
    e(f"v_lshlrev_b32 v{L8}, 3, v1")
    e(f"s_lshl_b32 s{S_T}, s{P_TILE}, 4\ns_add_u32 s{S_T}, s{S_T}, s{P_KQ}\ns_lshl_b32 s{S_T}, s{S_T}, 2\ns_add_u32 s{S_T}, s{S_T}, s{S_WAVE}\ns_mul_i32 s53, s{S_T}, 5120\ns_add_u32 s53, s53, {hex(WS_PART2)}")
    SB = RC
    slot = 0
    for p in range(4):
        q, n0, cnt = p >> 1, (p & 1) * 5, 5 - (p & 1)
        e(f"s_cmp_eq_u32 s{P_KQ}, {p}\ns_cbranch_scc1 K3_KEEP{p}")
        e(f"s_add_u32 s48, s53, {p*16*5120}")
        if XB16[0]:
            B = SB + (p % 3) * 20
            PK = B + 8
            for k in range(cnt):
                for r in range(4): e(f"v_accvgpr_read_b32 v{B+(k&1)*4+r}, a{ACC+(q*9+n0+k)*4+r}")
                e(f"v_cvt_pk_bf16_f32 v{PK+2*k}, v{B+(k&1)*4}, v{B+(k&1)*4+1}\nv_cvt_pk_bf16_f32 v{PK+2*k+1}, v{B+(k&1)*4+2}, v{B+(k&1)*4+3}")
                if k == 1: e(f"buffer_store_dwordx4 {vr(PK,4)}, v{L16}, s[{SRD_WS}:{SRD_WS+3}], s48 offen {SST[0]}")
                if k == 3: e(f"buffer_store_dwordx4 {vr(PK+4,4)}, v{L16}, s[{SRD_WS}:{SRD_WS+3}], s48 offen offset:1024 {SST[0]}")
                if k == 4: e(f"buffer_store_dwordx2 {vr(PK+8,2)}, v{L8}, s[{SRD_WS}:{SRD_WS+3}], s48 offen offset:2048 {SST[0]}")
        else:
            for k in range(cnt):
                if k == 4: e("s_add_u32 s48, s48, 4096")
                e(f"buffer_store_dwordx4 {ar(ACC+(q*9+n0+k)*4,4)}, v{L16}, s[{SRD_WS}:{SRD_WS+3}], s48 offen offset:{(k&3)*1024} {SC}")
        e(f"s_branch K3_NEXT{p}")
        em.label(f"K3_KEEP{p}")
        for k in range(cnt):
            for r in range(4): e(f"v_accvgpr_read_b32 v{E0+4*k+r}, a{ACC+(q*9+n0+k)*4+r}")
        em.label(f"K3_NEXT{p}")
    e("s_mov_b32 s54, 0xbfb8aa3b\ns_mov_b32 s55, 0xffff0000")
    e("s_waitcnt vmcnt(0)")
    e(f"s_lshl_b32 s48, s{P_TILE}, 2\ns_add_u32 s48, s48, s{P_KQ}\ns_lshl_b32 s48, s48, 2\ns_add_u32 s48, s48, s{S_WAVE}\ns_lshl_b32 s48, s48, 2\ns_add_u32 s48, s48, {hex(WS_FLAGS2)}")
    e("v_mov_b32 v5, 0\nv_mov_b32 v6, 1\ns_mov_b64 exec, 1")
    e(f"buffer_store_dword v6, v5, s[{SRD_WS}:{SRD_WS+3}], s48 offen {SST[0]}")
    e("s_mov_b64 exec, -1")
    e(f"v_mov_b32 v255, v{U+11}")
    if YMODE[0] == "end": ytask(em)
    YL = RC
    for k in range(20): e(f"v_mov_b32 v{YL+k}, 0")
    for t in range(8): e(f"v_readlane_b32 s{P_IDX+t}, v255, {t}")
    e(f"s_lshl_b32 s48, s{P_Q16}, 4\nv_add_u32 v5, s48, v3\nv_mov_b32 v6, 8")
    for t in range(8):
        e(f"v_cmp_eq_u32 vcc, s{P_IDX+t}, v5\nv_mov_b32 v7, {t}\ns_nop 0\nv_cndmask_b32 v6, v6, v7, vcc")
    e("v_cmp_gt_u32 vcc, 8, v6\ns_cbranch_vccz K3_NOMOE")
    if NOYP[0]: e("s_branch K3_NOMOE")
    e("s_and_b64 exec, exec, vcc")
    e("v_mov_b32 v7, 0")
    em.label("K3_YPOLL")
    e(f"s_mov_b32 s49, {hex(C_YRED)}\nbuffer_load_dword v5, v7, s[{SRD_WS}:{SRD_WS+3}], s49 offen {SC}\ns_waitcnt vmcnt(0)")
    e(f"v_readfirstlane_b32 s48, v5\ns_cmp_ge_u32 s48, {YTGT[0]}\ns_cbranch_scc1 K3_YOK\ns_sleep 8\ns_branch K3_YPOLL")
    em.label("K3_YOK")
    if YTGT[0] == 432:
        e(f"v_lshlrev_b32 v5, 2, v6\ns_mov_b32 s48, {hex(WS_RSEL)}\nbuffer_load_dword v{U+10}, v5, s[{SRD_WS}:{SRD_WS+3}], s48 offen {SC}")
        e(f"v_mul_u32_u24 v6, 2304, v6\nv_lshl_add_u32 v6, v4, 4, v6")
        e(f"s_mul_i32 s48, s{P_NB}, 576\ns_lshl_b32 s49, s{P_N0}, 6\ns_add_u32 s48, s48, s49\ns_add_u32 s48, s48, {hex(WS_YF3)}")
        for th in range(3):
            for k in range(5):
                e(f"buffer_load_dwordx4 {vr(YL+20*th+4*k,4)}, v6, s[{SRD_WS}:{SRD_WS+3}], s48 offen offset:{k*64} {SC}")
            e(f"s_add_u32 s48, s48, {8*2304}")
        e("s_waitcnt vmcnt(0)")
        for k in range(20):
            y = YL + k
            e(f"v_add_f32 v{y}, v{y}, v{YL+20+k}\nv_add_f32 v{y}, v{y}, v{YL+40+k}")
            e(f"v_cvt_pk_bf16_f32 v{y}, v{y}, v{y}\nv_lshlrev_b32 v{y}, 16, v{y}\nv_mul_f32 v{y}, v{y}, v{U+10}\nv_cvt_pk_bf16_f32 v{y}, v{y}, v{y}\nv_lshlrev_b32 v{y}, 16, v{y}")
    else:
        e(f"v_mul_u32_u24 v6, 2304, v6\nv_lshl_add_u32 v6, v4, 4, v6")
        e(f"s_mul_i32 s48, s{P_NB}, 576\ns_lshl_b32 s49, s{P_N0}, 6\ns_add_u32 s48, s48, s49\ns_add_u32 s48, s48, {hex(WS_YF)}")
        for k in range(5):
            e(f"buffer_load_dwordx4 {vr(YL+4*k,4)}, v6, s[{SRD_WS}:{SRD_WS+3}], s48 offen offset:{k*64} {SC}")
        e("s_waitcnt vmcnt(0)")
    e("s_mov_b64 exec, -1")
    em.label("K3_NOMOE")
    for k in range(5):
        t = GG + 4 * k
        e(f"v_lshlrev_b32 v{t}, 16, v{XN+2*k}\nv_and_b32 v{t+1}, s55, v{XN+2*k}\nv_lshlrev_b32 v{t+2}, 16, v{XN+2*k+1}\nv_and_b32 v{t+3}, s55, v{XN+2*k+1}")
        for r in range(4): e(f"v_add_f32 v{t+r}, v{t+r}, v{YL+4*k+r}")
        e(f"v_cvt_pk_bf16_f32 v{U}, v{t}, v{t+1}\nv_cvt_pk_bf16_f32 v{U+1}, v{t+2}, v{t+3}")
        e(f"v_lshlrev_b32 v{t}, 16, v{U}\nv_and_b32 v{t+1}, s55, v{U}\nv_lshlrev_b32 v{t+2}, 16, v{U+1}\nv_and_b32 v{t+3}, s55, v{U+1}")
        for r in range(4): e(f"v_mul_f32 v{U+2+r}, s54, v{t+r}")
        for r in range(4): e(f"v_exp_f32 v{U+2+r}, v{U+2+r}")
        e("s_nop 0")
        for r in range(4): e(f"v_add_f32 v{U+2+r}, 1.0, v{U+2+r}")
        for r in range(4): e(f"v_rcp_f32 v{U+2+r}, v{U+2+r}")
        e("s_nop 0")
        for r in range(4): e(f"v_mul_f32 v{t+r}, v{t+r}, v{U+2+r}")
        e(f"v_cvt_pk_bf16_f32 v{U}, v{t}, v{t+1}\nv_cvt_pk_bf16_f32 v{U+1}, v{t+2}, v{t+3}")
        e(f"v_lshlrev_b32 v{t}, 16, v{U}\nv_and_b32 v{t+1}, s55, v{U}\nv_lshlrev_b32 v{t+2}, 16, v{U+1}\nv_and_b32 v{t+3}, s55, v{U+1}")
    e("s_mov_b64 exec, 15")
    e(f"s_lshl_b32 s48, s{P_TILE}, 6\ns_lshl_b32 s49, s{S_WAVE}, 2\ns_add_u32 s48, s48, s49\ns_add_u32 s48, s48, {hex(WS_FLAGS2)}\nv_lshlrev_b32 v5, 4, v1")
    em.label("K3_POLL")
    e(f"buffer_load_dword v6, v5, s[{SRD_WS}:{SRD_WS+3}], s48 offen {SC}\ns_waitcnt vmcnt(0)")
    e("v_cmp_ne_u32 vcc, 1, v6\ns_cbranch_vccz K3_POLLED\ns_sleep 3\ns_branch K3_POLL")
    em.label("K3_POLLED")
    e("s_mov_b64 exec, -1")
    stamp(em)
    for i in range(1, 4):
        e(f"s_add_u32 s48, s{P_KQ}, {i}\ns_and_b32 s48, s48, 3\ns_lshl_b32 s49, s{P_TILE}, 2\ns_add_u32 s49, s49, s{P_KQ}\ns_lshl_b32 s49, s49, 2\ns_add_u32 s49, s49, s48\ns_lshl_b32 s49, s49, 2\ns_add_u32 s49, s49, s{S_WAVE}\ns_mul_i32 s49, s49, 5120\ns_add_u32 s49, s49, {hex(WS_PART2)}")
        if XB16[0]:
            b = RC + (i - 1) * 12
            e(f"buffer_load_dwordx4 {vr(b,4)}, v{L16}, s[{SRD_WS}:{SRD_WS+3}], s49 offen {SC}")
            e(f"buffer_load_dwordx4 {vr(b+4,4)}, v{L16}, s[{SRD_WS}:{SRD_WS+3}], s49 offen offset:1024 {SC}")
            e(f"buffer_load_dwordx2 {vr(b+8,2)}, v{L8}, s[{SRD_WS}:{SRD_WS+3}], s49 offen offset:2048 {SC}")
        else:
            for k in range(5):
                if k == 4: e("s_add_u32 s49, s49, 4096")
                e(f"buffer_load_dwordx4 {vr(RC+((i-1)*5+k)*4,4)}, v{L16}, s[{SRD_WS}:{SRD_WS+3}], s49 offen offset:{(k&3)*1024} {SC}")
    if XB16[0]: e("s_waitcnt vmcnt(0)")
    for k in range(5):
        if k == 4: e(f"s_bitcmp1_b32 s{P_KQ}, 0\ns_cbranch_scc1 K3_FIN")
        a = E0 + 4 * k; g = GG + 4 * k
        if XB16[0]:
            for i in range(3):
                b = RC + i * 12 + 2 * k
                e(f"v_lshlrev_b32 v{U}, 16, v{b}\nv_and_b32 v{U+1}, s55, v{b}\nv_lshlrev_b32 v{U+2}, 16, v{b+1}\nv_and_b32 v{U+3}, s55, v{b+1}")
                e(f"v_pk_add_f32 {vr(a,2)}, {vr(a,2)}, {vr(U,2)}\nv_pk_add_f32 {vr(a+2,2)}, {vr(a+2,2)}, {vr(U+2,2)}")
        else:
            e("s_waitcnt vmcnt(4)")
            for i in range(3):
                for r in range(0, 4, 2):
                    e(f"v_pk_add_f32 {vr(a+r,2)}, {vr(a+r,2)}, {vr(RC+(i*5+k)*4+r,2)}")
        e(f"v_cvt_pk_bf16_f32 v{U}, v{a}, v{a+1}\nv_cvt_pk_bf16_f32 v{U+1}, v{a+2}, v{a+3}")
        e(f"v_lshlrev_b32 v{a}, 16, v{U}\nv_and_b32 v{a+1}, s55, v{U}\nv_lshlrev_b32 v{a+2}, 16, v{U+1}\nv_and_b32 v{a+3}, s55, v{U+1}")
        for r in range(4): e(f"v_mul_f32 v{a+r}, v{a+r}, v{g+r}")
        e(f"v_cvt_pk_bf16_f32 v{U}, v{a}, v{a+1}\nv_cvt_pk_bf16_f32 v{U+1}, v{a+2}, v{a+3}")
        e(f"v_lshlrev_b32 v{a}, 16, v{U}\nv_and_b32 v{a+1}, s55, v{U}\nv_lshlrev_b32 v{a+2}, 16, v{U+1}\nv_and_b32 v{a+3}, s55, v{U+1}")
        e(f"v_lshlrev_b32 v{g}, 16, v{XL+2*k}\nv_and_b32 v{g+1}, s55, v{XL+2*k}\nv_lshlrev_b32 v{g+2}, 16, v{XL+2*k+1}\nv_and_b32 v{g+3}, s55, v{XL+2*k+1}")
        for r in range(4): e(f"v_add_f32 v{a+r}, v{a+r}, v{g+r}")
        e(f"v_cvt_pk_bf16_f32 v{U+6+2*(k&1)}, v{a}, v{a+1}\nv_cvt_pk_bf16_f32 v{U+7+2*(k&1)}, v{a+2}, v{a+3}")
        e(f"s_add_u32 s48, s{P_N0}, {k}\ns_lshl_b32 s48, s48, 5")
        e(f"buffer_store_dwordx2 {vr(U+6+2*(k&1),2)}, v{XV}, s[{SRD_OUT}:{SRD_OUT+3}], s48 offen")
    em.label("K3_FIN")
```

```python
from asmlib import *
import struct
MF = "v_mfma_f32_16x16x32_bf16"
def f2u(f): return struct.unpack("<I", struct.pack("<f", f))[0]
WS_IDX = WS_MOE
WS_RSEL = WS_MOE + 32
WS_YF = WS_MOE + 0x1000

def wave_umax(em, v, t):
    e = em.e
    for rot in (8, 4, 2, 1):
        e("s_nop 1")
        e(f"v_max_u32_dpp v{t}, v{v}, v{v} row_ror:{rot} row_mask:0xf bank_mask:0xf")
        v, t = t, v
    e(f"v_mov_b32 v{t}, v{v}\ns_nop 1\nv_permlane16_swap_b32 v{v}, v{t}\nv_max_u32 v{v}, v{v}, v{t}")
    e(f"v_mov_b32 v{t}, v{v}\ns_nop 1\nv_permlane32_swap_b32 v{v}, v{t}\nv_max_u32 v{v}, v{v}, v{t}")
    return v

def emit_topk(em, srd_ws, lane, B, sc="", ldsc="", pre_a=None):
    e = em.e
    Kq = B
    A = B + 32
    if pre_a is None:
        e(f"v_lshlrev_b32 v{A}, 4, v{lane}")
        for i in range(8):
            e(f"s_mov_b32 s29, {hex(WS_R + i*1024)}")
            e(f"buffer_load_dwordx4 {vr(Kq+4*i,4)}, v{A}, s[{srd_ws}:{srd_ws+3}], s29 offen {ldsc}")
    e(f"v_lshlrev_b32 v{A+1}, 2, v{lane}")
    e("s_waitcnt vmcnt(0)")
    if pre_a is not None:
        for i in range(32): e(f"v_accvgpr_read_b32 v{Kq+i}, a{pre_a+i}")
    for i in range(8):
        for k in range(4):
            r = Kq + 4 * i + k
            e(f"v_ashrrev_i32 v{A+2}, 31, v{r}")
            e(f"v_or_b32 v{A+2}, 0x80000000, v{A+2}")
            e(f"v_xor_b32 v{r}, v{r}, v{A+2}")
            e(f"v_and_b32 v{r}, 0xffff0000, v{r}")
            e(f"v_sub_u32 v{A+3}, {0xFFFF - (256*i + k)}, v{A+1}")
            e(f"v_or_b32 v{r}, v{r}, v{A+3}")
    e(f"v_mov_b32 v{A+4}, 0")
    for t in range(8):
        m = A + 5
        e(f"v_max3_u32 v{m}, v{Kq}, v{Kq+1}, v{Kq+2}")
        for i in range(3, 31, 2):
            e(f"v_max3_u32 v{m}, v{m}, v{Kq+i}, v{Kq+i+1}")
        e(f"v_max_u32 v{m}, v{m}, v{Kq+31}")
        wave_umax(em, m, A + 6)
        e(f"v_add_u32 v{A+4}, v{A+4}, v{m}")
        e(f"v_mov_b32 v{A+8+t}, v{A+4}")
        if t < 7:
            for i in range(32): e(f"v_sub_u32 v{Kq+i}, v{Kq+i}, v{m}")
    e(f"v_mov_b32 v{A+5}, v{A+8}")
    for t in range(1, 8):
        e(f"v_cmp_eq_u32 vcc, {t}, v{lane}\ns_nop 1\nv_cndmask_b32 v{A+5}, v{A+5}, v{A+8+t}, vcc")
    e(f"v_and_b32 v{A+6}, 0xffff, v{A+5}\nv_sub_u32 v{A+6}, 0xffff, v{A+6}")
    e(f"v_and_b32 v{A+7}, 0xffff0000, v{A+5}")
    e(f"v_ashrrev_i32 v{A+16}, 31, v{A+7}")
    e(f"v_not_b32 v{A+16}, v{A+16}")
    e(f"v_or_b32 v{A+16}, 0x80000000, v{A+16}")
    e(f"v_xor_b32 v{A+7}, v{A+7}, v{A+16}\nv_and_b32 v{A+7}, 0xffff0000, v{A+7}")
    e(f"v_mul_f32 v{A+7}, 0xbfb8aa3b, v{A+7}\nv_exp_f32 v{A+7}, v{A+7}\ns_nop 0\nv_add_f32 v{A+7}, 1.0, v{A+7}\nv_rcp_f32 v{A+7}, v{A+7}\ns_nop 0")
    e(f"v_cvt_pk_bf16_f32 v{A+7}, v{A+7}, v{A+7}\nv_lshlrev_b32 v{A+7}, 16, v{A+7}")
    e(f"v_lshlrev_b32 v{A+16}, 2, v{lane}")
    e(f"v_cmp_gt_u32 vcc, 8, v{lane}")
    e("s_and_saveexec_b64 s[76:77], vcc")
    e(f"s_mov_b32 s29, {hex(WS_IDX)}")
    e(f"buffer_store_dword v{A+6}, v{A+16}, s[{srd_ws}:{srd_ws+3}], s29 offen {sc}")
    e(f"buffer_store_dword v{A+7}, v{A+16}, s[{srd_ws}:{srd_ws+3}], s29 offen offset:32 {sc}")
    e("s_mov_b64 exec, s[76:77]")

def k4(name="k4_topk_kernel"):
    em = Em(); e = em.e
    kernel_head(em, name)
    e("s_cmp_ge_u32 s2, 1\ns_cbranch_scc1 K4_END")
    e(f"s_load_dwordx2 s[4:5], s[0:1], {KA_WS}\ns_waitcnt lgkmcnt(0)")
    srd(em, 8, 4, 5, WS_SIZE)
    emit_topk(em, 8, 0, 8)
    em.label("K4_END"); e("s_endpgm")
    return em.text(), kernel_desc(name, 72, 80, 72), f"; @launch kernel={name} grid=(1,1,1) block=(64,1,1) lds=0"

MG, MU, MD, MX = 0, 36864, 73728, 110592
MOE_LDS = 110592 + 4096

def emit_gd(em, j_s, wave_s, lane, B, AB, srd_ws, srd_g, srd_u, srd_d, st):
    e = em.e
    g = B; q = B + 1; t0 = B + 2
    e(f"v_lshrrev_b32 v{g}, 4, v{lane}\nv_and_b32 v{q}, 15, v{lane}")
    dv = B + 4
    e(f"v_lshrrev_b32 v{t0}, 2, v{lane}\nv_mul_u32_u24 v{t0}, 0x2400, v{t0}\nv_and_b32 v{t0+1}, 3, v{lane}\nv_lshl_add_u32 v{dv}, v{t0+1}, 4, v{t0}")
    e(f"s_lshl_b32 s{st}, s{j_s}, 6\ns_mul_i32 s{st+1}, s{wave_s}, {16*9216}\ns_add_u32 s{st}, s{st}, s{st+1}")
    e(f"s_lshl_b32 s{st+1}, s{wave_s}, 10")
    for k in range(9):
        e(f"s_add_u32 m0, s{st+1}, {MG + k*4096}\ns_nop 0")
        e(f"buffer_load_dwordx4 v{dv}, s[{srd_g}:{srd_g+3}], s{st} offen lds")
        e(f"s_add_u32 m0, s{st+1}, {MU + k*4096}\ns_nop 0")
        e(f"buffer_load_dwordx4 v{dv}, s[{srd_u}:{srd_u+3}], s{st} offen lds")
        e(f"s_add_u32 s{st}, s{st}, {64*9216}")
    e(f"v_lshlrev_b32 v{t0}, 4, v{lane}")
    e(f"s_mul_i32 s{st}, s{j_s}, 36864\ns_add_u32 s{st}, s{st}, s{st+1}")
    for k in range(9):
        e(f"s_add_u32 m0, s{st+1}, {MD + k*4096}\ns_nop 0")
        e(f"buffer_load_dwordx4 v{t0}, s[{srd_d}:{srd_d+3}], s{st} offen lds")
        e(f"s_add_u32 s{st}, s{st}, 4096")
    e(f"v_and_b32 v{t0+1}, 7, v{q}\nv_lshlrev_b32 v{t0+1}, 2, v{t0+1}")
    e(f"s_mov_b32 s{st}, {hex(WS_IDX)}")
    e(f"buffer_load_dword v{dv+1}, v{t0+1}, s[{srd_ws}:{srd_ws+3}], s{st} offen sc0 sc1")
    e("s_waitcnt vmcnt(0)")
    e(f"v_lshrrev_b32 v{t0}, 4, v{dv+1}\nv_mul_u32_u24 v{t0}, 0x4800, v{t0}")
    e(f"v_and_b32 v{t0+1}, 15, v{dv+1}\nv_lshl_add_u32 v{t0+1}, v{g}, 4, v{t0+1}\nv_lshl_add_u32 v{dv+2}, v{t0+1}, 4, v{t0}")
    XF = B + 8
    for sg in range(18):
        e(f"s_mov_b32 s{st}, {hex(WS_XNF + (sg & ~3) * 1024)}")
        e(f"buffer_load_dwordx4 {vr(XF+4*sg,4)}, v{dv+2}, s[{srd_ws}:{srd_ws+3}], s{st} offen offset:{(sg&3)*1024}")
    ta = B + 80
    e(f"v_bfe_u32 v{t0}, v{lane}, 2, 2\nv_lshl_add_u32 v{t0}, v{g}, 2, v{t0}\nv_lshlrev_b32 v{t0}, 6, v{t0}")
    e(f"v_and_b32 v{t0+1}, 3, v{lane}\nv_lshl_add_u32 v{ta}, v{t0+1}, 3, v{t0}")
    e(f"s_and_b32 s{st}, s{wave_s}, 1\ns_lshl_b32 s{st}, s{st}, 5\ns_lshr_b32 s{st+1}, s{wave_s}, 1\ns_mul_i32 s{st+1}, s{st+1}, 36864\ns_add_u32 s{st}, s{st}, s{st+1}")
    e(f"v_add_u32 v{ta}, s{st}, v{ta}")
    e("s_waitcnt vmcnt(0)\ns_barrier")
    AF = B + 84
    AC = B + 100
    for sg in range(18):
        a = AF + (sg & 3) * 4
        e(f"ds_read_b64_tr_b16 {vr(a,2)}, v{ta} offset:{sg*2048}")
        e(f"ds_read_b64_tr_b16 {vr(a+2,2)}, v{ta} offset:{sg*2048+1024}")
        if sg >= 2:
            s2 = sg - 2
            e("s_waitcnt lgkmcnt(4)")
            e(f"{MF} {vr(AC,4)}, {vr(AF+(s2&3)*4,4)}, {vr(XF+4*s2,4)}, {'0' if s2 == 0 else vr(AC,4)}")
    for s2 in (16, 17):
        e(f"s_waitcnt lgkmcnt({2 if s2 == 16 else 0})")
        e(f"{MF} {vr(AC,4)}, {vr(AF+(s2&3)*4,4)}, {vr(XF+4*s2,4)}, {vr(AC,4)}")
    e("s_nop 7\ns_nop 1")
    U = B + 104
    e(f"v_cvt_pk_bf16_f32 v{U}, v{AC}, v{AC+1}\nv_cvt_pk_bf16_f32 v{U+1}, v{AC+2}, v{AC+3}")
    e(f"v_lshlrev_b32 v{AC}, 16, v{U}\nv_and_b32 v{AC+1}, 0xffff0000, v{U}\nv_lshlrev_b32 v{AC+2}, 16, v{U+1}\nv_and_b32 v{AC+3}, 0xffff0000, v{U+1}")
    lab = f"GD_NOSILU_{id(em) & 0xffff}"
    e(f"s_cmp_lt_u32 s{wave_s}, 2\ns_cbranch_scc0 {lab}")
    for r in range(4): e(f"v_mul_f32 v{U+r}, 0xbfb8aa3b, v{AC+r}")
    for r in range(4): e(f"v_exp_f32 v{U+r}, v{U+r}")
    e("s_nop 0")
    for r in range(4): e(f"v_add_f32 v{U+r}, 1.0, v{U+r}")
    for r in range(4): e(f"v_rcp_f32 v{U+r}, v{U+r}")
    e("s_nop 0")
    for r in range(4): e(f"v_mul_f32 v{AC+r}, v{AC+r}, v{U+r}")
    e(f"v_cvt_pk_bf16_f32 v{U}, v{AC}, v{AC+1}\nv_cvt_pk_bf16_f32 v{U+1}, v{AC+2}, v{AC+3}")
    e(f"v_lshlrev_b32 v{AC}, 16, v{U}\nv_and_b32 v{AC+1}, 0xffff0000, v{U}\nv_lshlrev_b32 v{AC+2}, 16, v{U+1}\nv_and_b32 v{AC+3}, 0xffff0000, v{U+1}")
    em.label(lab)
    e(f"v_lshlrev_b32 v{t0}, 4, v{lane}\nv_add_u32 v{t0}, {MX}, v{t0}\ns_lshl_b32 s{st}, s{wave_s}, 10\nv_add_u32 v{t0+1}, s{st}, v{t0}")
    e(f"ds_write_b128 v{t0+1}, {vr(AC,4)}")
    e("s_waitcnt lgkmcnt(0)\ns_barrier")
    H = XF
    for k in range(4): e(f"ds_read_b128 {vr(H+4*k,4)}, v{t0} offset:{k*1024}")
    e("s_waitcnt lgkmcnt(0)")
    for r in range(8): e(f"v_mul_f32 v{H+r}, v{H+r}, v{H+8+r}")
    HF = XF + 16
    for k in range(4): e(f"v_cvt_pk_bf16_f32 v{HF+k}, v{H+2*k}, v{H+2*k+1}")
    e(f"v_bfe_u32 v{t0}, v{lane}, 2, 2\nv_lshl_add_u32 v{t0}, v{g}, 2, v{t0}\nv_mul_u32_u24 v{t0}, 0x480, v{t0}")
    e(f"v_and_b32 v{t0+1}, 3, v{lane}\nv_lshl_add_u32 v{ta}, v{t0+1}, 3, v{t0}")
    e(f"s_mul_i32 s{st}, s{wave_s}, 288\ns_add_u32 s{st}, s{st}, {MD}\nv_add_u32 v{ta}, s{st}, v{ta}")
    DA = XF + 20
    for N in range(9):
        e(f"ds_read_b64_tr_b16 {vr(DA+4*N,2)}, v{ta} offset:{N*32}")
        e(f"ds_read_b64_tr_b16 {vr(DA+4*N+2,2)}, v{ta} offset:{16*1152 + N*32}")
    e("s_waitcnt lgkmcnt(0)")
    Y = B + 84
    Y = XF + 56
    for N in range(9):
        e(f"{MF} {vr(Y+4*N,4)}, {vr(DA+4*N,4)}, {vr(HF,4)}, 0")
    e("s_nop 7\ns_nop 1")
    e(f"v_and_b32 v{t0}, 7, v{q}\nv_mul_u32_u24 v{t0}, 2304, v{t0}\nv_lshl_add_u32 v{t0}, v{g}, 4, v{t0}")
    e(f"s_mul_i32 s{st}, s{j_s}, {8*2304}\ns_mul_i32 s{st+1}, s{wave_s}, 576\ns_add_u32 s{st}, s{st}, s{st+1}\ns_add_u32 s{st}, s{st}, {hex(WS_YP)}")
    for N in range(9):
        e(f"buffer_store_dwordx4 {vr(Y+4*N,4)}, v{t0}, s[{srd_ws}:{srd_ws+3}], s{st} offen offset:{N*64}")

def k5(name="k5_gd_kernel"):
    em = Em(); e = em.e
    kernel_head(em, name)
    e("s_cmp_ge_u32 s2, 144\ns_cbranch_scc1 K5_END")
    e(f"s_load_dwordx2 s[4:5], s[0:1], {KA_WS}\ns_load_dwordx2 s[6:7], s[0:1], {KA_WG}\ns_load_dwordx2 s[24:25], s[0:1], {KA_WU}\ns_load_dwordx2 s[26:27], s[0:1], {KA_WD}")
    e("v_and_b32 v1, 63, v0\nv_lshrrev_b32 v2, 6, v0\ns_nop 0\nv_readfirstlane_b32 s30, v2")
    e("s_waitcnt lgkmcnt(0)")
    srd(em, 8, 4, 5, WS_SIZE); srd(em, 12, 6, 7, 576 * 9216); srd(em, 16, 24, 25, 576 * 9216); srd(em, 20, 26, 27, 4608 * 1152)
    emit_gd(em, 2, 30, 1, 8, None, 8, 12, 16, 20, 40)
    em.label("K5_END"); e("s_endpgm")
    return em.text(), kernel_desc(name, 160, 64, 160), f"; @launch kernel={name} grid=(144,1,1) block=(256,1,1) lds={MOE_LDS}"

def k6(name="k6_red_kernel"):
    em = Em(); e = em.e
    kernel_head(em, name)
    e("s_cmp_ge_u32 s2, 21\ns_cbranch_scc1 K6_END")
    e(f"s_load_dwordx2 s[4:5], s[0:1], {KA_WS}")
    e("s_lshl_b32 s3, s2, 8\nv_add_u32 v1, s3, v0")
    e("s_waitcnt lgkmcnt(0)")
    srd(em, 8, 4, 5, WS_SIZE)
    e("v_lshlrev_b32 v2, 2, v1")
    e(f"s_mov_b32 s20, {hex(WS_YP)}")
    for k in range(4): e(f"v_mov_b32 v{10+k}, 0")
    e("s_mov_b32 s21, 18")
    em.label("K6_LOOP")
    for k in range(8):
        e(f"buffer_load_dword v{16+k}, v2, s[8:11], s20 offen")
        e(f"s_add_u32 s20, s20, {8*2304}")
    for k in range(8):
        e(f"s_waitcnt vmcnt({7-k})\nv_add_f32 v{10+(k&3)}, v{10+(k&3)}, v{16+k}")
    e("s_sub_u32 s21, s21, 1\ns_cmp_lg_u32 s21, 0\ns_cbranch_scc1 K6_LOOP")
    e("v_add_f32 v10, v10, v11\nv_add_f32 v12, v12, v13\nv_add_f32 v10, v10, v12")
    e("s_mov_b32 s22, 0x71c72\nv_mul_lo_u32 v3, v1, s22\nv_lshrrev_b32 v3, 28, v3")
    e(f"v_min_u32 v4, 7, v3\nv_lshlrev_b32 v4, 2, v4\ns_mov_b32 s20, {hex(WS_RSEL)}")
    e("buffer_load_dword v5, v4, s[8:11], s20 offen\ns_waitcnt vmcnt(0)")
    e("v_cvt_pk_bf16_f32 v10, v10, v10\nv_lshlrev_b32 v10, 16, v10\nv_mul_f32 v10, v10, v5\nv_cvt_pk_bf16_f32 v10, v10, v10\nv_lshlrev_b32 v10, 16, v10")
    e("v_cmp_gt_u32 vcc, 8, v3\ns_nop 1\nv_cndmask_b32 v10, 0, v10, vcc")
    e("v_cmp_gt_u32 vcc, 0x1440, v1")
    e("s_and_saveexec_b64 s[24:25], vcc\ns_cbranch_execz K6_END")
    e(f"s_mov_b32 s20, {hex(WS_YF)}")
    e("buffer_store_dword v10, v2, s[8:11], s20 offen")
    em.label("K6_END"); e("s_endpgm")
    return em.text(), kernel_desc(name, 32, 32, 32), f"; @launch kernel={name} grid=(21,1,1) block=(256,1,1) lds=0"
```

```python
from asmlib import *
from moe import WS_IDX, WS_RSEL, WS_YF, wave_umax, emit_topk
import k2 as K
from k2 import *
MF = "v_mfma_f32_16x16x32_bf16"

SRD_G, SRD_U, SRD_D = 56, 60, 88
SRD_DBG = 68
FUSED = [True]
WOFPF = [False]
S_WPF = 49
NGD = [144]
SRD_XS = 16
S_J = 72
S_GOFF = 73
S_DOFF = 74
S_W1K = 75
GV = 132
FLG = 133
IDXV = 134
XSB = 135
TA = 12
TA2 = 13
PFV = 252
S_PF = 86
PFD = 248
def XFR(sg):
    if K.PV2[0]:
        if sg < 8: return ar(144 + 4 * sg, 4)
        if sg < 12: return vr(136 + 4 * (sg - 8), 4)
        if sg < 15: return ar(244 + 4 * (sg - 12), 4)
        return vr(72 + 4 * (sg - 15), 4)
    return ar(212 + 4 * sg, 4) if sg < 11 else vr(104 + 4 * (sg - 11), 4)
def set_pv2():
    global GV, FLG, IDXV, XSB
    GV, FLG, IDXV, XSB = 240, 241, 242, 243
L_WG, L_WU, L_WD = 65536, 131072, 0
L_WG2, L_WU2 = 36864, 40960
L_MX = 45056
DBG_IDXFLAG = 4
WS_XSF = WS_MOE + 0x8000
DBG_XSFLAG = 8
XSWG = 200


def setup_front(em):
    e = em.e
    e(f"s_and_b32 s{S_J}, s2, 7\ns_mul_i32 s{S_J}, s{S_J}, 18\ns_lshr_b32 s{S_T}, s2, 3\ns_add_u32 s{S_J}, s{S_J}, s{S_T}")
    e(f"s_lshl_b32 s{S_GOFF}, s{S_J}, 6\ns_mul_i32 s{S_T}, s{S_WAVE}, {16*9216}\ns_add_u32 s{S_GOFF}, s{S_GOFF}, s{S_T}")
    e(f"s_lshl_b32 s{S_W1K}, s{S_WAVE}, 10")
    e(f"s_mul_i32 s{S_DOFF}, s{S_J}, 36864\ns_add_u32 s{S_DOFF}, s{S_DOFF}, s{S_W1K}")
    e(f"v_lshrrev_b32 v{PFV}, 3, v1\nv_mul_u32_u24 v{PFV}, 0x2400, v{PFV}\nv_and_b32 v{PFV+1}, 7, v1\nv_lshl_add_u32 v{PFV}, v{PFV+1}, 4, v{PFV}")
    e(f"s_and_b32 s{S_PF}, s2, 7\ns_mul_i32 s{S_PF}, s{S_PF}, 1152\ns_lshr_b32 s{S_T}, s2, 3\ns_lshl_b32 s{S_T}, s{S_T}, 2\ns_add_u32 s{S_T}, s{S_T}, s{S_WAVE}\ns_mul_i32 s{S_T}, s{S_T}, {8*9216}\ns_add_u32 s{S_PF}, s{S_PF}, s{S_T}")
    e(f"s_cmp_lt_u32 s2, {NGD[0]}\ns_cselect_b32 s{S_T}, {576*9216}, 0\ns_cselect_b32 s{S_T2}, {4608*1152}, 0")
    srd(em, SRD_G, 80, 81, f"s{S_T}")
    srd(em, SRD_U, 82, 83, f"s{S_T}")
    srd(em, SRD_D, 84, 85, f"s{S_T2}")

def prefetch_items():
    r = []
    for srd_ in (SRD_G, SRD_U):
        for cb in range(9):
            r.append(("vmem", f"buffer_load_dwordx4 {vr(PFD,4)}, v{PFV}, s[{srd_}:{srd_+3}], s{S_PF} offen offset:{cb*128}"))
    for k in range(9):
        r.append(("salu", f"s_add_u32 s{S_T2}, s{S_DOFF}, {k*4096}"))
        r.append(("vmem", f"buffer_load_dwordx4 {vr(PFD,4)}, v{L16}, s[{SRD_D}:{SRD_D+3}], s{S_T2} offen"))
    return r

def setup_early(em):
    e = em.e
    e(f"v_lshrrev_b32 v{GV}, 2, v1\nv_mul_u32_u24 v{GV}, 0x2400, v{GV}\nv_and_b32 v{FLG}, 3, v1\nv_lshl_add_u32 v{GV}, v{FLG}, 4, v{GV}")

def gpf(srd_, soff_add):
    return ("vmem", f"s_add_u32 s{S_T}, s{S_GOFF}, {soff_add}\nbuffer_load_dwordx4 {vr(PFD,4)}, v{GV}, s[{srd_}:{srd_+3}], s{S_T} offen")
def dpf(k):
    return ("vmem", f"s_add_u32 s{S_T}, s{S_DOFF}, {k*4096}\nbuffer_load_dwordx4 {vr(PFD,4)}, v{L16}, s[{SRD_D}:{SRD_D+3}], s{S_T} offen")

def extras_first(u):
    RB = 64 * 9216
    dma = []
    if u == 5: dma += [flag_item()]
    import k2new
    if k2new.EARLY[0]:
        if u < 4: dma += [gdma(SRD_U, L_WU + k * 4096, k * RB) for k in (2 * u, 2 * u + 1)]
    else:
        if u == 6: dma += [gdma(SRD_U, L_WU + k * 4096, k * RB) for k in range(0, 4)]
        if u == 7: dma += [gdma(SRD_U, L_WU + k * 4096, k * RB) for k in range(4, 8)]
    return dma, []

def flag_item():
    return ("vmem", f"v_mov_b32 v{IDXV}, 0\nbuffer_load_dword v{FLG}, v{IDXV}, s[{SRD_DBG}:{SRD_DBG+3}], 0 offen offset:{DBG_IDXFLAG} sc0 sc1")

def after_first(em, gather=True):
    e = em.e
    e(f"v_readfirstlane_b32 s{S_T}, v{FLG}\ns_cmp_lg_u32 s{S_T}, 0\ns_cbranch_scc1 K2_IDXOK")
    em.label("K2_IDXSPIN")
    e(f"s_sleep 4\nbuffer_load_dword v{FLG}, v{IDXV}, s[{SRD_DBG}:{SRD_DBG+3}], 0 offen offset:{DBG_IDXFLAG} sc0 sc1\ns_waitcnt vmcnt(0)")
    e(f"v_readfirstlane_b32 s{S_T}, v{FLG}\ns_cmp_lg_u32 s{S_T}, 0\ns_cbranch_scc0 K2_IDXSPIN")
    em.label("K2_IDXOK")
    if gather:
        e(f"s_cmp_eq_u32 s2, {XSWG}\ns_cbranch_scc0 K2_NOXS0")
        xs_gather(em)
        em.label("K2_NOXS0")

def xs_gather(em, wait_wof=False):
    e = em.e
    if wait_wof:
        e(f"v_mov_b32 v104, 0\ns_mov_b32 s{S_T}, {hex(WS_FLAGS + 0x1000)}")
        em.label("K2_XSW")
        e(f"buffer_load_dword v105, v104, s[{SRD_WS}:{SRD_WS+3}], s{S_T} offen sc0 sc1\ns_waitcnt vmcnt(0)")
        e(f"v_readfirstlane_b32 s{S_T2}, v105\ns_cmp_ge_u32 s{S_T2}, 256\ns_cbranch_scc1 K2_XSW_OK\ns_sleep 4\ns_branch K2_XSW")
        em.label("K2_XSW_OK")
    T = 234 if K.PV2[0] else 104
    def DR(k): return (ar(244 + 4 * (k % 3), 4) if K.PV2[0] else vr(T + 4 + 4 * k, 4))
    e(f"v_and_b32 v{T}, 7, v1\nv_lshlrev_b32 v{T}, 2, v{T}\ns_mov_b32 s{S_T}, {hex(WS_IDX)}")
    e(f"buffer_load_dword v{T+1}, v{T}, s[{SRD_WS}:{SRD_WS+3}], s{S_T} offen sc0 sc1\ns_waitcnt vmcnt(0)")
    e(f"v_lshrrev_b32 v{T+2}, 4, v{T+1}\nv_mul_u32_u24 v{T+2}, 0x4800, v{T+2}")
    e(f"v_and_b32 v{T+3}, 15, v{T+1}\nv_lshl_add_u32 v{T+3}, v4, 4, v{T+3}\nv_lshl_add_u32 v{T+2}, v{T+3}, 4, v{T+2}")
    e(f"s_lshl_b32 s{S_T}, s{S_WAVE}, 10\nv_add_u32 v{T+2}, s{S_T}, v{T+2}")
    e(f"v_and_b32 v{T+3}, 7, v1\nv_lshl_add_u32 v{T+3}, v4, 3, v{T+3}\nv_lshlrev_b32 v{T+3}, 4, v{T+3}\ns_lshl_b32 s{S_T}, s{S_WAVE}, 9\nv_add_u32 v{T+3}, s{S_T}, v{T+3}")
    rounds = ((0, 1, 2), (3, 4)) if K.PV2[0] else ((0, 1, 2, 3, 4),)
    for rd in rounds:
        for k in rd:
            e(f"s_mov_b32 s{S_T}, {k*4096}")
            e(f"buffer_load_dwordx4 {DR(k)}, v{T+2}, s[{SRD_WS}:{SRD_WS+3}], s{S_T} offen sc0 sc1")
        e("s_waitcnt vmcnt(0)")
        for k in rd:
            if k < 4: e(f"s_mov_b32 s{S_T}, {hex(WS_XSF + k*2048)}")
            else: e(f"s_cmp_lt_u32 s{S_WAVE}, 2\ns_mov_b32 s{S_T}, 0x7ffffff0\ns_cselect_b32 s{S_T}, {hex(WS_XSF + k*2048)}, s{S_T}")
            e(f"buffer_store_dwordx4 {DR(k)}, v{T+3}, s[{SRD_WS}:{SRD_WS+3}], s{S_T} offen sc0 sc1")
        if len(rounds) > 1: e("s_nop 1")
    e("s_waitcnt vmcnt(0)\ns_barrier")
    e(f"s_cmp_eq_u32 s{S_WAVE}, 0\ns_cbranch_scc0 K2_NOXS")
    e(f"v_mov_b32 v{T}, 0\nv_mov_b32 v{T+1}, 1\ns_mov_b64 exec, 1")
    e(f"buffer_store_dword v{T+1}, v{T}, s[{SRD_DBG}:{SRD_DBG+3}], 0 offen offset:{DBG_XSFLAG} sc0 sc1")
    e("s_mov_b64 exec, -1")
    em.label("K2_NOXS")

def loop_head_flag(em):
    em.e(f"v_mov_b32 v{IDXV}, 0\nbuffer_load_dword v{FLG}, v{IDXV}, s[{SRD_DBG}:{SRD_DBG+3}], 0 offen offset:{DBG_XSFLAG} sc0 sc1")
    em.e(f"s_mov_b32 s{S_T}, {hex(WS_FLAGS + 0x1000)}\nbuffer_load_dword v{XSB}, v{IDXV}, s[{SRD_WS}:{SRD_WS+3}], s{S_T} offen sc0 sc1")

def setup_before_last(em):
    e = em.e
    e(f"v_readfirstlane_b32 s{S_T}, v{FLG}\ns_cmp_lg_u32 s{S_T}, 0\ns_cbranch_scc1 K2_XSOK")
    em.label("K2_XSSPIN")
    e(f"s_sleep 4\nbuffer_load_dword v{FLG}, v{IDXV}, s[{SRD_DBG}:{SRD_DBG+3}], 0 offen offset:{DBG_XSFLAG} sc0 sc1\ns_waitcnt vmcnt(0)")
    e(f"v_readfirstlane_b32 s{S_T}, v{FLG}\ns_cmp_lg_u32 s{S_T}, 0\ns_cbranch_scc0 K2_XSSPIN")
    em.label("K2_XSOK")
    e(f"v_readfirstlane_b32 s{S_T}, v{XSB}\ns_cmp_ge_u32 s{S_T}, 256\ns_cbranch_scc1 K2_WOFOK")
    em.label("K2_WOFSPIN")
    e(f"s_sleep 4\ns_mov_b32 s{S_T}, {hex(WS_FLAGS + 0x1000)}\nbuffer_load_dword v{XSB}, v{IDXV}, s[{SRD_WS}:{SRD_WS+3}], s{S_T} offen sc0 sc1\ns_waitcnt vmcnt(0)")
    e(f"v_readfirstlane_b32 s{S_T}, v{XSB}\ns_cmp_ge_u32 s{S_T}, 256\ns_cbranch_scc0 K2_WOFSPIN")
    em.label("K2_WOFOK")
    e(f"v_and_b32 v{XSB}, 7, v1\nv_lshl_add_u32 v{XSB}, v4, 3, v{XSB}\nv_lshlrev_b32 v{XSB}, 4, v{XSB}\nv_add_u32 v{XSB}, {hex(WS_XSF)}, v{XSB}")
    e(f"s_mov_b32 s{SRD_XS}, s{SRD_WS}\ns_mov_b32 s{SRD_XS+1}, s{SRD_WS+1}\ns_cmp_lt_u32 s2, {NGD[0]}\ns_cselect_b32 s{SRD_XS+2}, {hex(WS_OF)}, 0\ns_mov_b32 s{SRD_XS+3}, 0x00020000")
    e(f"s_mov_b32 s96, 0x00ff00ff\ns_mov_b32 s97, 0x00ff00ff")
    e(f"s_and_b32 s{S_WPF}, s2, 1\ns_mul_i32 s{S_WPF}, s{S_WPF}, {64*36864}\ns_lshr_b32 s{S_T}, s2, 3\ns_lshl_b32 s{S_T}, s{S_T}, 2\ns_add_u32 s{S_T}, s{S_T}, s{S_WAVE}\ns_mul_i32 s{S_T}, s{S_T}, 18432\ns_add_u32 s{S_WPF}, s{S_WPF}, s{S_T}\ns_add_u32 s{S_WPF}, s{S_WPF}, {hex(WS_WOF)}")

def xsel_item(sg):
    return ("vmem", f"buffer_load_dwordx4 {XFR(sg)}, v{XSB}, s[{SRD_XS}:{SRD_XS+3}], s{S_X4+(sg>>3)} offen offset:{(sg&7)*512} sc0 sc1")

def gdma(srd_, lds, soff_add, tagname=None):
    return ("vmem", f"s_add_u32 m0, s{S_W1K}, {lds}\ns_add_u32 s{S_T}, s{S_GOFF}, {soff_add}\nbuffer_load_dwordx4 v{GV}, s[{srd_}:{srd_+3}], s{S_T} offen lds")
def ddma(k):
    return ("vmem", f"s_add_u32 m0, s{S_W1K}, {L_WD + k*4096}\ns_add_u32 s{S_T}, s{S_DOFF}, {k*4096}\nbuffer_load_dwordx4 v{L16}, s[{SRD_D}:{SRD_D+3}], s{S_T} offen lds")

def extras_last(u):
    dma = []
    RB = 64 * 9216
    if K.PV2[0] and u == 7:
        for sg in range(15): dma.append(xsel_item(sg))
    if u < 4 and not K.PV2[0]:
        for sg in range([0, 5, 10, 14][u], [5, 10, 14, 18][u]): dma.append(xsel_item(sg))
    if WOFPF[0] and u < 6:
        for k in range(3 * u, 3 * u + 3):
            dma.append(("vmem", f"s_add_u32 s{S_T}, s{S_WPF}, {k*1024}\nbuffer_load_dwordx4 {vr(PFD,4)}, v{L16}, s[{SRD_WS}:{SRD_WS+3}], s{S_T} offen sc0 sc1"))
    if u == 4:
        for k in range(0, 4): dma.append(ddma(k))
        for k in (0, 1): dma.append(gdma(SRD_G, L_WG + k * 4096, k * RB))
    if u == 5:
        for k in range(4, 8): dma.append(ddma(k))
        for k in (2, 3): dma.append(gdma(SRD_G, L_WG + k * 4096, k * RB))
    if u == 6:
        for k in range(4, 8): dma.append(gdma(SRD_G, L_WG + k * 4096, k * RB))
        dma.append(ddma(8))
    if u == 7:
        dma.append(gdma(SRD_G, L_WG2, 8 * RB)); dma.append(gdma(SRD_U, L_WU2, 8 * RB))
    return dma, []

def emit_tail(em, ts=False, fused=False, mid=None):
    e = em.e
    if ts:
        for k in (3, 4): e(f"s_mov_b32 s{80+2*k}, 0\ns_mov_b32 s{81+2*k}, 0")
    if not fused: e("s_cmp_lt_u32 s2, {NGD[0]}\ns_cbranch_scc0 K2_TAILEND")
    t0 = 8
    g = 4
    e(f"v_bfe_u32 v{t0}, v1, 2, 2\nv_lshl_add_u32 v{t0}, v{g}, 2, v{t0}\nv_lshlrev_b32 v{t0+2}, 6, v{t0}")
    e(f"v_and_b32 v{t0+1}, 3, v1\nv_lshl_add_u32 v{t0+2}, v{t0+1}, 3, v{t0+2}")
    e(f"s_and_b32 s{S_T}, s{S_WAVE}, 1\ns_lshl_b32 s{S_T}, s{S_T}, 5")
    e(f"s_cmp_lt_u32 s{S_WAVE}, 2\ns_mov_b32 s{S_T2}, {L_WU}\ns_cselect_b32 s{S_T2}, {L_WG}, s{S_T2}\ns_add_u32 s{S_T2}, s{S_T2}, s{S_T}\nv_add_u32 v{TA}, s{S_T2}, v{t0+2}")
    e(f"s_cmp_lt_u32 s{S_WAVE}, 2\ns_mov_b32 s{S_T2}, {L_WU2}\ns_cselect_b32 s{S_T2}, {L_WG2}, s{S_T2}\ns_add_u32 s{S_T2}, s{S_T2}, s{S_T}\nv_add_u32 v{TA2}, s{S_T2}, v{t0+2}")
    e(f"v_mul_u32_u24 v{t0+3}, 0x480, v{t0}\nv_lshl_add_u32 v{t0+3}, v{t0+1}, 3, v{t0+3}\ns_mul_i32 s{S_T}, s{S_WAVE}, 288\nv_add_u32 v{t0+3}, s{S_T}, v{t0+3}")
    if not fused: e("s_waitcnt vmcnt(0)\ns_barrier")
    if ts: K.stamp(em, True)
    AF = (152 if K.PV2[0] else 136); AC = 32
    def ald(sg):
        a = AF + (sg & 7) * 4
        if sg < 16:
            e(f"ds_read_b64_tr_b16 {vr(a,2)}, v{TA} offset:{sg*2048}\nds_read_b64_tr_b16 {vr(a+2,2)}, v{TA} offset:{sg*2048+1024}")
        else:
            e(f"ds_read_b64_tr_b16 {vr(a,2)}, v{TA2} offset:{(sg-16)*2048}\nds_read_b64_tr_b16 {vr(a+2,2)}, v{TA2} offset:{(sg-16)*2048+1024}")
    for sg in range(7): ald(sg)
    DA = 40
    for sg in range(18):
        if sg + 7 < 18: ald(sg + 7)
        left = min(sg + 7, 17) - sg
        if K.PV2[0] and fused and sg == 15: e("s_waitcnt vmcnt(4)")
        e(f"s_waitcnt lgkmcnt({2*left})")
        e(f"{MF} {vr(AC,4)}, {vr(AF+(sg&7)*4,4)}, {XFR(sg)}, {'0' if sg == 0 else vr(AC,4)}")
    for N in range(9):
        e(f"ds_read_b64_tr_b16 {vr(DA+4*N,2)}, v{t0+3} offset:{L_WD + N*32}")
        e(f"ds_read_b64_tr_b16 {vr(DA+4*N+2,2)}, v{t0+3} offset:{L_WD + 16*1152 + N*32}")
    if mid is not None: mid()
    e("s_nop 3")
    U = 36
    e(f"v_cvt_pk_bf16_f32 v{U}, v{AC}, v{AC+1}\nv_cvt_pk_bf16_f32 v{U+1}, v{AC+2}, v{AC+3}")
    e(f"v_lshlrev_b32 v{AC}, 16, v{U}\nv_and_b32 v{AC+1}, 0xffff0000, v{U}\nv_lshlrev_b32 v{AC+2}, 16, v{U+1}\nv_and_b32 v{AC+3}, 0xffff0000, v{U+1}")
    e(f"s_cmp_lt_u32 s{S_WAVE}, 2\ns_cbranch_scc0 K2_NOSILU")
    for r in range(4): e(f"v_mul_f32 v{U+r}, 0xbfb8aa3b, v{AC+r}")
    for r in range(4): e(f"v_exp_f32 v{U+r}, v{U+r}")
    e("s_nop 0")
    for r in range(4): e(f"v_add_f32 v{U+r}, 1.0, v{U+r}")
    for r in range(4): e(f"v_rcp_f32 v{U+r}, v{U+r}")
    e("s_nop 0")
    for r in range(4): e(f"v_mul_f32 v{AC+r}, v{AC+r}, v{U+r}")
    e(f"v_cvt_pk_bf16_f32 v{U}, v{AC}, v{AC+1}\nv_cvt_pk_bf16_f32 v{U+1}, v{AC+2}, v{AC+3}")
    e(f"v_lshlrev_b32 v{AC}, 16, v{U}\nv_and_b32 v{AC+1}, 0xffff0000, v{U}\nv_lshlrev_b32 v{AC+2}, 16, v{U+1}\nv_and_b32 v{AC+3}, 0xffff0000, v{U+1}")
    em.label("K2_NOSILU")
    e(f"v_add_u32 v{t0}, {L_MX}, v{L16}\nv_add_u32 v{t0+1}, s{S_W1K}, v{t0}")
    e(f"ds_write_b128 v{t0+1}, {vr(AC,4)}")
    e("s_waitcnt lgkmcnt(0)\ns_barrier")
    if ts: K.stamp(em, True)
    H = 80
    for k in range(4): e(f"ds_read_b128 {vr(H+4*k,4)}, v{t0} offset:{k*1024}")
    e("s_waitcnt lgkmcnt(0)")
    for r in range(8): e(f"v_mul_f32 v{H+r}, v{H+r}, v{H+8+r}")
    HF = 96
    for k in range(4): e(f"v_cvt_pk_bf16_f32 v{HF+k}, v{H+2*k}, v{H+2*k+1}")
    e("s_nop 1")
    Y = (184 if K.PV2[0] else 168)
    for N in range(9): e(f"{MF} {vr(Y+4*N,4)}, {vr(DA+4*N,4)}, {vr(HF,4)}, 0")
    e(f"v_lshl_add_u32 v{t0}, v{g}, 3, v3\nv_lshlrev_b32 v{t0}, 4, v{t0}")
    e(f"s_mul_i32 s{S_T}, s2, 18432\ns_mul_i32 s{S_T2}, s{S_WAVE}, 4608\ns_add_u32 s{S_T}, s{S_T}, s{S_T2}\ns_add_u32 s{S_T}, s{S_T}, {hex(WS_YP)}")
    e("s_mov_b64 exec, s[96:97]\ns_nop 4")
    for N in range(9):
        e(f"buffer_store_dwordx4 {vr(Y+4*N,4)}, v{t0}, s[{SRD_WS}:{SRD_WS+3}], s{S_T} offen offset:{(N*512)%4096}" + (" sc0 sc1" if fused else ""))
        if N == 7: e(f"s_add_u32 s{S_T}, s{S_T}, 4096")
    e("s_mov_b64 exec, -1")
    if not fused: em.label("K2_TAILEND")

TKA = 212
def topk_async1(em):
    e = em.e
    e(f"s_cmp_eq_u32 s2, 255\ns_cbranch_scc0 K2_TKA1\ns_cmp_eq_u32 s{S_WAVE}, 1\ns_cbranch_scc0 K2_TKA1")
    e(f"v_and_b32 v{TMP+6}, 7, v1\nv_lshlrev_b32 v{TMP+6}, 5, v{TMP+6}")
    e(f"buffer_load_dword v{TMP+7}, v{TMP+6}, s[{SRD_DBG}:{SRD_DBG+3}], 0 offen sc0 sc1")
    em.label("K2_TKA1")
    return em.vm
def topk_async2(em, pos):
    e = em.e
    e(f"s_cmp_eq_u32 s2, 255\ns_cbranch_scc0 K2_TKA2\ns_cmp_eq_u32 s{S_WAVE}, 1\ns_cbranch_scc0 K2_TKA2")
    e(f"v_and_b32 v{TMP+6}, 7, v1\nv_lshlrev_b32 v{TMP+6}, 5, v{TMP+6}")
    e(f"s_waitcnt vmcnt({min(em.vm - pos, 63)})")
    e(f"v_cmp_gt_u32 vcc, 32, v{TMP+7}\ns_cbranch_vccz K2_TKGO")
    em.label("K2_TKPOLL")
    e(f"s_sleep 2\nbuffer_load_dword v{TMP+7}, v{TMP+6}, s[{SRD_DBG}:{SRD_DBG+3}], 0 offen sc0 sc1\ns_waitcnt vmcnt(0)")
    e(f"v_cmp_gt_u32 vcc, 32, v{TMP+7}\ns_cbranch_vccnz K2_TKPOLL")
    em.label("K2_TKGO")
    e(f"v_lshlrev_b32 v{TMP+6}, 4, v1")
    for i in range(8):
        e(f"s_mov_b32 s29, {hex(WS_R + i*1024)}")
        e(f"buffer_load_dwordx4 {ar(TKA+4*i,4)}, v{TMP+6}, s[{SRD_WS}:{SRD_WS+3}], s29 offen sc0 sc1")
    em.label("K2_TKA2")
    e("s_nop 3")

def emit_front_topk(em):
    e = em.e
    e(f"s_cmp_eq_u32 s2, 255\ns_cbranch_scc0 K2_NOTOPK\ns_cmp_eq_u32 s{S_WAVE}, 1\ns_cbranch_scc0 K2_NOTOPK")
    emit_topk(em, SRD_WS, 1, 8, sc="sc0 sc1", ldsc="sc0 sc1", pre_a=TKA)
    e("s_waitcnt vmcnt(0)")
    e(f"v_mov_b32 v66, 0\nv_mov_b32 v67, 1\ns_mov_b64 s[76:77], exec\ns_mov_b64 exec, 1")
    e(f"buffer_store_dword v67, v66, s[{SRD_DBG}:{SRD_DBG+3}], 0 offen offset:{DBG_IDXFLAG} sc0 sc1")
    e("s_mov_b64 exec, s[76:77]")
    em.label("K2_NOTOPK")

def loop_head_prefetch(em):
    e = em.e
    for val, which in ((6, "G"), (5, "U"), (4, "D")):
        e(f"s_cmp_eq_u32 s{S_LOOP}, {val}\ns_cbranch_scc0 K2_LHP{val}")
        if which in "GU":
            srd_ = SRD_G if which == "G" else SRD_U
            e(f"v_lshrrev_b32 v104, 3, v1\nv_mul_u32_u24 v104, 0x2400, v104\nv_and_b32 v105, 7, v1\nv_lshl_add_u32 v104, v105, 4, v104")
            for cb in range(9): e(f"buffer_load_dwordx4 v[108:111], v104, s[{srd_}:{srd_+3}], s{S_PF} offen offset:{cb*128}")
        else:
            for k in range(9): e(f"s_add_u32 s{S_T2}, s{S_DOFF}, {k*4096}\nbuffer_load_dwordx4 v[108:111], v{L16}, s[{SRD_D}:{SRD_D+3}], s{S_T2} offen")
        em.label(f"K2_LHP{val}")
```

```python
from asmlib import *
from moe import WS_IDX, WS_RSEL, WS_YF, emit_topk
import k2 as K
from k2 import *
import moe2 as M
from moe2 import SRD_G, SRD_U, SRD_D, SRD_DBG, SRD_XS, S_J, S_GOFF, S_DOFF, S_W1K, NGD, WS_XSF, DBG_IDXFLAG, DBG_XSFLAG, XSWG
MF = "v_mfma_f32_16x16x32_bf16"
GVE = 150
L_WG, L_WU, L_WD, L_WG2, L_WU2, L_MX = 32768, 81920, 114688, 151552, 155648, 159744
RB = 64 * 9216
C_WOF, C_Y, C_YRED = WS_FLAGS + 0x1000, WS_FLAGS + 0x1000 + 128, WS_FLAGS + 0x1000 + 256
YT0 = 220
def XFR(sg): return ar(32 + 4 * sg, 4)
POS = {}
PROF = [False]

def gdma(srd_, lds, soff):
    return [("vmem", f"s_add_u32 m0, s{S_W1K}, {lds}\ns_add_u32 s{S_T}, s{S_GOFF}, {soff}\nbuffer_load_dwordx4 v{GVE}, s[{srd_}:{srd_+3}], s{S_T} offen lds")]
def ddma(k):
    return [("vmem", f"s_add_u32 m0, s{S_W1K}, {L_WD + k*4096}\ns_add_u32 s{S_T}, s{S_DOFF}, {k*4096}\nbuffer_load_dwordx4 v{L16}, s[{SRD_D}:{SRD_D+3}], s{S_T} offen lds")]
def dpf(k):
    return [("vmem", f"s_add_u32 s{S_T}, s{S_DOFF}, {k*4096}\nbuffer_load_dwordx4 v[144:147], v{L16}, s[{SRD_D}:{SRD_D+3}], s{S_T} offen")]

def front_setup(em):
    e = em.e
    e(f"v_lshrrev_b32 v{GVE}, 2, v1\nv_mul_u32_u24 v{GVE}, 0x2400, v{GVE}\nv_and_b32 v{GVE+1}, 3, v1\nv_lshl_add_u32 v{GVE}, v{GVE+1}, 4, v{GVE}")
    e(f"s_mov_b32 s{SRD_XS}, s{SRD_WS}" if False else "s_nop 0")

def only(em, wg, wave, lab):
    em.e(f"s_cmp_eq_u32 s2, {wg}\ns_cbranch_scc0 {lab}" + (f"\ns_cmp_eq_u32 s{S_WAVE}, {wave}\ns_cbranch_scc0 {lab}" if wave is not None else ""))

def qproj_pre(em, sg):
    e = em.e
    T = 152
    if sg == 0:
        only(em, 255, 1, "GE_TK0")
        e(f"v_and_b32 v{TMP+6}, 7, v1\nv_lshlrev_b32 v{TMP+6}, 5, v{TMP+6}")
        e(f"buffer_load_dword v{TMP+7}, v{TMP+6}, s[{SRD_DBG}:{SRD_DBG+3}], 0 offen sc0 sc1")
        em.label("GE_TK0"); POS["tk0"] = em.vm
    if sg == 1:
        only(em, 255, 1, "GE_TK1")
        e(f"v_and_b32 v{TMP+6}, 7, v1\nv_lshlrev_b32 v{TMP+6}, 5, v{TMP+6}")
        e(f"s_waitcnt vmcnt({min(em.vm - POS['tk0'], 63)})")
        e(f"v_cmp_gt_u32 vcc, 32, v{TMP+7}\ns_cbranch_vccz GE_TKGO")
        em.label("GE_TKPOLL")
        e(f"s_sleep 2\nbuffer_load_dword v{TMP+7}, v{TMP+6}, s[{SRD_DBG}:{SRD_DBG+3}], 0 offen sc0 sc1\ns_waitcnt vmcnt(0)")
        e(f"v_cmp_gt_u32 vcc, 32, v{TMP+7}\ns_cbranch_vccnz GE_TKPOLL")
        em.label("GE_TKGO")
        e(f"v_lshlrev_b32 v{TMP+6}, 4, v1")
        for i in range(8):
            e(f"s_mov_b32 s29, {hex(WS_R + i*1024)}")
            e(f"buffer_load_dwordx4 {ar(212+4*i,4)}, v{TMP+6}, s[{SRD_WS}:{SRD_WS+3}], s29 offen sc0 sc1")
        em.label("GE_TK1"); e("s_nop 3")
    if sg == 3:
        only(em, 255, 1, "GE_TK3")
        emit_topk(em, SRD_WS, 1, T, sc="sc0 sc1", ldsc="sc0 sc1", pre_a=212)
        e("s_waitcnt vmcnt(0)")
        e(f"v_mov_b32 v{T}, 0\nv_mov_b32 v{T+1}, 1\ns_mov_b64 exec, 1")
        e(f"buffer_store_dword v{T+1}, v{T}, s[{SRD_DBG}:{SRD_DBG+3}], 0 offen offset:{DBG_IDXFLAG} sc0 sc1")
        e("s_mov_b64 exec, -1")
        em.label("GE_TK3"); e("s_nop 3")
    if sg == 8:
        only(em, XSWG, None, "GE_X8")
        e(f"v_mov_b32 v{T}, 0\nbuffer_load_dword v{T+1}, v{T}, s[{SRD_DBG}:{SRD_DBG+3}], 0 offen offset:{DBG_IDXFLAG} sc0 sc1")
        em.label("GE_X8"); POS["x8"] = em.vm
    if sg == 9:
        only(em, XSWG, None, "GE_X9")
        e(f"v_mov_b32 v{T}, 0\ns_waitcnt vmcnt({min(em.vm - POS['x8'], 63)})")
        e(f"v_readfirstlane_b32 s28, v{T+1}\ns_cmp_lg_u32 s28, 0\ns_cbranch_scc1 GE_X9OK")
        em.label("GE_X9SPIN")
        e(f"s_sleep 2\nbuffer_load_dword v{T+1}, v{T}, s[{SRD_DBG}:{SRD_DBG+3}], 0 offen offset:{DBG_IDXFLAG} sc0 sc1\ns_waitcnt vmcnt(0)")
        e(f"v_readfirstlane_b32 s28, v{T+1}\ns_cmp_lg_u32 s28, 0\ns_cbranch_scc0 GE_X9SPIN")
        em.label("GE_X9OK")
        e(f"v_and_b32 v{T}, 7, v1\nv_lshlrev_b32 v{T}, 2, v{T}\ns_mov_b32 s28, {hex(WS_IDX)}")
        e(f"buffer_load_dword v{T+1}, v{T}, s[{SRD_WS}:{SRD_WS+3}], s28 offen sc0 sc1")
        em.label("GE_X9"); POS["x9"] = em.vm
    if sg == 11:
        only(em, XSWG, None, "GE_X11")
        e(f"s_waitcnt vmcnt({min(em.vm - POS['x9'], 63)})")
        e(f"v_lshrrev_b32 v{T+2}, 4, v{T+1}\nv_mul_u32_u24 v{T+2}, 0x4800, v{T+2}")
        e(f"v_and_b32 v{T+3}, 15, v{T+1}\nv_lshl_add_u32 v{T+3}, v4, 4, v{T+3}\nv_lshl_add_u32 v{T+2}, v{T+3}, 4, v{T+2}")
        e(f"s_lshl_b32 s28, s{S_WAVE}, 10\nv_add_u32 v{T+2}, s28, v{T+2}")
        for k in range(5):
            e(f"s_mov_b32 s28, {k*4096}")
            e(f"buffer_load_dwordx4 {vr(T+4+4*k,4)}, v{T+2}, s[{SRD_WS}:{SRD_WS+3}], s28 offen sc0 sc1")
        em.label("GE_X11"); POS["x11"] = em.vm
    if sg == 13:
        only(em, XSWG, None, "GE_X13")
        e(f"v_and_b32 v{T+3}, 7, v1\nv_lshl_add_u32 v{T+3}, v4, 3, v{T+3}\nv_lshlrev_b32 v{T+3}, 4, v{T+3}\ns_lshl_b32 s28, s{S_WAVE}, 9\nv_add_u32 v{T+3}, s28, v{T+3}")
        e(f"s_waitcnt vmcnt({min(em.vm - POS['x11'], 63)})")
        for k in range(5):
            if k < 4: e(f"s_mov_b32 s28, {hex(WS_XSF + k*2048)}")
            else: e(f"s_cmp_lt_u32 s{S_WAVE}, 2\ns_mov_b32 s28, 0x7ffffff0\ns_cselect_b32 s28, {hex(WS_XSF + k*2048)}, s28")
            e(f"buffer_store_dwordx4 {vr(T+4+4*k,4)}, v{T+3}, s[{SRD_WS}:{SRD_WS+3}], s28 offen sc0 sc1")
        em.label("GE_X13"); POS["x13"] = em.vm
    if sg == 14:
        only(em, XSWG, None, "GE_X14")
        e(f"s_waitcnt vmcnt({min(em.vm - POS['x13'], 63)})")
        em.label("GE_X14")
    if sg == 15:
        only(em, XSWG, 0, "GE_X15")
        e(f"v_mov_b32 v{T}, 0\nv_mov_b32 v{T+1}, 1\ns_mov_b64 exec, 1")
        e(f"buffer_store_dword v{T+1}, v{T}, s[{SRD_DBG}:{SRD_DBG+3}], 0 offen offset:{DBG_XSFLAG} sc0 sc1")
        e("s_mov_b64 exec, -1")
        em.label("GE_X15"); e("s_nop 3")
    if sg == 15:
        e(f"v_mov_b32 v148, 0")
        POS["xf"] = em.vmem(f"buffer_load_dword v149, v148, s[{SRD_DBG}:{SRD_DBG+3}], 0 offen offset:{DBG_XSFLAG} sc0 sc1")
    if sg == 17:
        K.stamp(em, PROF[0], 24)
        e(f"s_cmp_lt_u32 s2, {NGD[0]}\ns_cbranch_scc0 GE_NOXL")
        em.wait_vm(POS["xf"])
        e(f"v_readfirstlane_b32 s28, v149\ns_cmp_lg_u32 s28, 0\ns_cbranch_scc1 GE_XFOK")
        em.label("GE_XFSPIN")
        e(f"s_sleep 2\nbuffer_load_dword v149, v148, s[{SRD_DBG}:{SRD_DBG+3}], 0 offen offset:{DBG_XSFLAG} sc0 sc1\ns_waitcnt vmcnt(0)")
        e(f"v_readfirstlane_b32 s28, v149\ns_cmp_lg_u32 s28, 0\ns_cbranch_scc0 GE_XFSPIN")
        em.label("GE_XFOK")
        K.stamp(em, PROF[0], 23)
        e(f"v_and_b32 v149, 7, v1\nv_lshl_add_u32 v149, v4, 3, v149\nv_lshlrev_b32 v149, 4, v149\nv_add_u32 v149, {hex(WS_XSF)}, v149")
        for s2 in range(18):
            e(f"buffer_load_dwordx4 {XFR(s2)}, v149, s[{SRD_WS}:{SRD_WS+3}], s{S_X4+(s2>>3)} offen offset:{(s2&7)*512} sc0 sc1")
        em.label("GE_NOXL"); e("s_nop 3")

def qproj_vm(sg):
    r = []
    if sg == 6: r += gdma(SRD_G, L_WG2, 8 * RB) + gdma(SRD_U, L_WU2, 8 * RB)
    if 8 <= sg <= 11:
        for k in (2 * (sg - 8), 2 * (sg - 8) + 1): r += gdma(SRD_G, L_WG + k * 4096, k * RB)
    if sg in (10, 11, 12):
        for k in range(3 * (sg - 10), 3 * (sg - 10) + 3): r += dpf(k)
    if sg == 14:
        for k in range(0, 4): r += gdma(SRD_U, L_WU + k * 4096, k * RB)
    if sg == 15:
        for k in range(4, 8): r += gdma(SRD_U, L_WU + k * 4096, k * RB)
    if sg == 17:
        for k in range(9): r += ddma(k)
    return r

def emit_gd(em):
    e = em.e
    K.stamp(em, PROF[0], 22)
    e(f"s_cmp_lt_u32 s2, {NGD[0]}\ns_cbranch_scc0 GE_NOGD")
    t0 = 8; g = 4; TA, TA2 = 12, 13
    e(f"v_bfe_u32 v{t0}, v1, 2, 2\nv_lshl_add_u32 v{t0}, v{g}, 2, v{t0}\nv_lshlrev_b32 v{t0+2}, 6, v{t0}")
    e(f"v_and_b32 v{t0+1}, 3, v1\nv_lshl_add_u32 v{t0+2}, v{t0+1}, 3, v{t0+2}")
    e(f"s_and_b32 s{S_T}, s{S_WAVE}, 1\ns_lshl_b32 s{S_T}, s{S_T}, 5")
    e(f"s_cmp_lt_u32 s{S_WAVE}, 2\ns_mov_b32 s{S_T2}, {L_WU}\ns_cselect_b32 s{S_T2}, {L_WG}, s{S_T2}\ns_add_u32 s{S_T2}, s{S_T2}, s{S_T}\nv_add_u32 v{TA}, s{S_T2}, v{t0+2}")
    e(f"s_cmp_lt_u32 s{S_WAVE}, 2\ns_mov_b32 s{S_T2}, {L_WU2}\ns_cselect_b32 s{S_T2}, {L_WG2}, s{S_T2}\ns_add_u32 s{S_T2}, s{S_T2}, s{S_T}\nv_add_u32 v{TA2}, s{S_T2}, v{t0+2}")
    e(f"v_mul_u32_u24 v{t0+3}, 0x480, v{t0}\nv_lshl_add_u32 v{t0+3}, v{t0+1}, 3, v{t0+3}\ns_mul_i32 s{S_T}, s{S_WAVE}, 288\ns_add_u32 s{S_T}, s{S_T}, {L_WD}\nv_add_u32 v{t0+3}, s{S_T}, v{t0+3}")
    e("s_waitcnt vmcnt(0)\ns_barrier")
    K.stamp(em, PROF[0], 20)
    AF = 104; AC = 32
    def ald(sg):
        a = AF + (sg & 7) * 4
        if sg < 16:
            e(f"ds_read_b64_tr_b16 {vr(a,2)}, v{TA} offset:{sg*2048}\nds_read_b64_tr_b16 {vr(a+2,2)}, v{TA} offset:{sg*2048+1024}")
        else:
            e(f"ds_read_b64_tr_b16 {vr(a,2)}, v{TA2} offset:{(sg-16)*2048}\nds_read_b64_tr_b16 {vr(a+2,2)}, v{TA2} offset:{(sg-16)*2048+1024}")
    for sg in range(7): ald(sg)
    DA = 40
    for sg in range(18):
        if sg + 7 < 18: ald(sg + 7)
        left = min(sg + 7, 17) - sg
        e(f"s_waitcnt lgkmcnt({2*left})")
        e(f"{MF} {vr(AC,4)}, {vr(AF+(sg&7)*4,4)}, {XFR(sg)}, {'0' if sg == 0 else vr(AC,4)}")
    for N in range(9):
        e(f"ds_read_b64_tr_b16 {vr(DA+4*N,2)}, v{t0+3} offset:{N*32}")
        e(f"ds_read_b64_tr_b16 {vr(DA+4*N+2,2)}, v{t0+3} offset:{16*1152 + N*32}")
    e("s_nop 3")
    U = 36
    e(f"v_cvt_pk_bf16_f32 v{U}, v{AC}, v{AC+1}\nv_cvt_pk_bf16_f32 v{U+1}, v{AC+2}, v{AC+3}")
    e(f"v_lshlrev_b32 v{AC}, 16, v{U}\nv_and_b32 v{AC+1}, 0xffff0000, v{U}\nv_lshlrev_b32 v{AC+2}, 16, v{U+1}\nv_and_b32 v{AC+3}, 0xffff0000, v{U+1}")
    e(f"s_cmp_lt_u32 s{S_WAVE}, 2\ns_cbranch_scc0 GE_NOSILU")
    for r in range(4): e(f"v_mul_f32 v{U+r}, 0xbfb8aa3b, v{AC+r}")
    for r in range(4): e(f"v_exp_f32 v{U+r}, v{U+r}")
    e("s_nop 0")
    for r in range(4): e(f"v_add_f32 v{U+r}, 1.0, v{U+r}")
    for r in range(4): e(f"v_rcp_f32 v{U+r}, v{U+r}")
    e("s_nop 0")
    for r in range(4): e(f"v_mul_f32 v{AC+r}, v{AC+r}, v{U+r}")
    e(f"v_cvt_pk_bf16_f32 v{U}, v{AC}, v{AC+1}\nv_cvt_pk_bf16_f32 v{U+1}, v{AC+2}, v{AC+3}")
    e(f"v_lshlrev_b32 v{AC}, 16, v{U}\nv_and_b32 v{AC+1}, 0xffff0000, v{U}\nv_lshlrev_b32 v{AC+2}, 16, v{U+1}\nv_and_b32 v{AC+3}, 0xffff0000, v{U+1}")
    em.label("GE_NOSILU")
    e(f"v_add_u32 v{t0}, {L_MX}, v{L16}\nv_add_u32 v{t0+1}, s{S_W1K}, v{t0}")
    e(f"ds_write_b128 v{t0+1}, {vr(AC,4)}")
    e("s_waitcnt lgkmcnt(0)\ns_barrier")
    H = 80
    for k in range(4): e(f"ds_read_b128 {vr(H+4*k,4)}, v{t0} offset:{k*1024}")
    e("s_waitcnt lgkmcnt(0)")
    for r in range(8): e(f"v_mul_f32 v{H+r}, v{H+r}, v{H+8+r}")
    HF = 96
    for k in range(4): e(f"v_cvt_pk_bf16_f32 v{HF+k}, v{H+2*k}, v{H+2*k+1}")
    e("s_nop 1")
    Y = 104
    for N in range(9): e(f"{MF} {vr(Y+4*N,4)}, {vr(DA+4*N,4)}, {vr(HF,4)}, 0")
    e(f"v_lshl_add_u32 v{t0}, v{g}, 3, v3\nv_lshlrev_b32 v{t0}, 4, v{t0}")
    e(f"s_mul_i32 s{S_T}, s2, 18432\ns_mul_i32 s{S_T2}, s{S_WAVE}, 4608\ns_add_u32 s{S_T}, s{S_T}, s{S_T2}\ns_add_u32 s{S_T}, s{S_T}, {hex(WS_YP)}")
    e("s_mov_b32 s96, 0x00ff00ff\ns_mov_b32 s97, 0x00ff00ff\ns_mov_b64 exec, s[96:97]\ns_nop 4")
    for N in range(9):
        e(f"buffer_store_dwordx4 {vr(Y+4*N,4)}, v{t0}, s[{SRD_WS}:{SRD_WS+3}], s{S_T} offen offset:{(N*512)%4096} sc0 sc1")
        if N == 7: e(f"s_add_u32 s{S_T}, s{S_T}, 4096")
    e("s_mov_b64 exec, -1")
    e("s_barrier")
    K.stamp(em, PROF[0], 21)
    em.label("GE_NOGD")

def after_first(em):
    import k3f
    e = em.e
    e(f"s_cmp_lt_u32 s2, {NGD[0]}\ns_cbranch_scc0 GE_YC\ns_cmp_eq_u32 s{S_PASS}, 0\ns_cbranch_scc0 GE_YC")
    k3f.atomic_inc(em, C_Y, "GE_YC", vt=104, st=S_T)

def loop_head(em):
    import k3f
    e = em.e
    def YR(i, r=None):
        return (f"v[{104+4*i}:{107+4*i}]" if i < 7 else f"a[{212+4*(i-7)}:{215+4*(i-7)}]")
    e(f"s_cmp_ge_u32 s2, {YT0}\ns_cbranch_scc0 GE_LH\ns_cmp_eq_u32 s{S_PASS}, 0\ns_cbranch_scc0 GE_LH")
    e(f"s_cmp_eq_u32 s{S_LOOP}, 5\ns_cbranch_scc0 GE_LH4")
    e(f"v_mov_b32 v132, 0\ns_mov_b32 s{S_T}, {hex(C_Y)}")
    em.label("GE_YP")
    e(f"buffer_load_dword v133, v132, s[{SRD_WS}:{SRD_WS+3}], s{S_T} offen sc0 sc1\ns_waitcnt vmcnt(0)")
    e(f"v_readfirstlane_b32 s{S_T2}, v133\ns_cmp_ge_u32 s{S_T2}, {NGD[0]}\ns_cbranch_scc1 GE_YPOK\ns_sleep 8\ns_branch GE_YP")
    em.label("GE_YPOK")
    e(f"s_sub_u32 s{S_T2}, s2, {YT0}\ns_lshl_b32 s{S_T2}, s{S_T2}, 9\ns_lshl_b32 s{S_T}, s{S_WAVE}, 7\ns_add_u32 s{S_T2}, s{S_T2}, s{S_T}")
    e(f"v_lshrrev_b32 v132, 3, v1\nv_mul_u32_u24 v132, 18432, v132\nv_and_b32 v133, 7, v1\nv_lshl_add_u32 v132, v133, 4, v132\nv_add_u32 v132, s{S_T2}, v132")
    e(f"s_mov_b32 s{S_T}, {hex(WS_YP)}")
    for i in range(18):
        e(f"buffer_load_dwordx4 {YR(i)}, v132, s[{SRD_WS}:{SRD_WS+3}], s{S_T} offen sc0 sc1")
        if i < 17: e(f"s_add_u32 s{S_T}, s{S_T}, {8*18432}")
    e(f"v_lshlrev_b32 v133, 2, v133\ns_mov_b32 s{S_T}, {hex(WS_RSEL)}")
    e(f"buffer_load_dword v134, v133, s[{SRD_WS}:{SRD_WS+3}], s{S_T} offen sc0 sc1")
    e("s_branch GE_LH")
    em.label("GE_LH4")
    e(f"s_cmp_eq_u32 s{S_LOOP}, 4\ns_cbranch_scc0 GE_LH3")
    for i in range(1, 7):
        for r in range(4): e(f"v_add_f32 v{104+r}, v{104+r}, v{104+4*i+r}")
    for i in range(11):
        for r in range(4): e(f"v_accvgpr_read_b32 v{108+r}, a{212+4*i+r}")
        for r in range(4): e(f"v_add_f32 v{104+r}, v{104+r}, v{108+r}")
    for r in range(4):
        y, tt = 104 + r, 108 + r
        e(f"s_nop 1\nv_add_f32_dpp v{tt}, v{y}, v{y} row_ror:8 row_mask:0xf bank_mask:0xf")
        e(f"v_mov_b32 v{y}, v{tt}\ns_nop 1\nv_permlane16_swap_b32 v{y}, v{tt}\nv_add_f32 v{y}, v{y}, v{tt}")
        e(f"v_mov_b32 v{tt}, v{y}\ns_nop 1\nv_permlane32_swap_b32 v{y}, v{tt}\nv_add_f32 v{y}, v{y}, v{tt}")
        e(f"v_cvt_pk_bf16_f32 v{y}, v{y}, v{y}\nv_lshlrev_b32 v{y}, 16, v{y}\nv_mul_f32 v{y}, v{y}, v134\nv_cvt_pk_bf16_f32 v{y}, v{y}, v{y}\nv_lshlrev_b32 v{y}, 16, v{y}")
    e(f"s_sub_u32 s{S_T2}, s2, {YT0}\ns_lshl_b32 s{S_T2}, s{S_T2}, 6\ns_lshl_b32 s{S_T}, s{S_WAVE}, 4\ns_add_u32 s{S_T2}, s{S_T2}, s{S_T}\ns_add_u32 s{S_T2}, s{S_T2}, {hex(WS_YF)}")
    e("v_and_b32 v132, 7, v1\nv_mul_u32_u24 v132, 2304, v132")
    e("s_mov_b64 exec, 0xff")
    e(f"buffer_store_dwordx4 v[104:107], v132, s[{SRD_WS}:{SRD_WS+3}], s{S_T2} offen sc0 sc1")
    e("s_mov_b64 exec, -1")
    e("s_branch GE_LH")
    em.label("GE_LH3")
    e(f"s_cmp_eq_u32 s{S_LOOP}, 3\ns_cbranch_scc0 GE_LH")
    e(f"v_mov_b32 v132, 0\nv_mov_b32 v133, 1\ns_mov_b64 exec, 1\ns_mov_b32 s{S_T}, {hex(C_YRED)}")
    e(f"buffer_atomic_add v133, v132, s[{SRD_WS}:{SRD_WS+3}], s{S_T} offen sc1")
    e("s_mov_b64 exec, -1")
    em.label("GE_LH")
```

```python
import sys, os
sys.path.insert(0, os.path.dirname(__file__))
from asmlib import *
from k1 import k1
from k2 import k2
from k3 import k3
from k3b import k3b
from moe import k4, k5, k6

HDR = open(os.path.join(os.path.dirname(__file__), "header.txt")).read()

def build(out, kernels):
    launches = [k[2] for k in kernels]
    s = HDR + "\n".join(launches) + "\n"
    s += '.amdgcn_target "amdgcn-amd-amdhsa--gfx950"\n.text\n'
    for k in kernels: s += k[0]
    s += '.section .rodata,"a"\n'
    for k in kernels: s += ".p2align 6\n" + k[1]
    open(out, "w").write(s)

if __name__ == "__main__":
    out = sys.argv[1] if len(sys.argv) > 1 else "dev.s"
    opts = dict(a.split("=") for a in sys.argv[2:])
    prof = opts.get("prof", "0") == "1"
    import k2new
    k2new.XNSC[0] = {'ss': 'sc0 sc1', 's1': 'sc1', 'pl': ''}[opts.get('xnsc', 'ss')]
    k2new.NPRE[0] = int(opts.get('npre0', 8)); k2new.NPRE[1] = int(opts.get('npre1', 14))
    k2new.QSTAMP[0] = opts.get('qstamp', '0') == '1'
    k2new.F3N[0] = int(opts.get('f3a', 5)); k2new.F3N[1] = int(opts.get('f3b', 8))
    k2new.FRONT[0] = int(opts.get('front', 2))
    k2new.GDE[0] = opts.get('gde', '0') == '1' and k2new.FRONT[0] == 2
    k2new.TSTAMP[0] = opts.get('tstamp', '0') == '1'
    k2new.CPF[0] = opts.get('cpf', '1') == '1'
    k2new.CPF3[0] = int(opts.get('cpf3', 0))
    k2new.CPF0[0] = opts.get('cpf0', '0') == '1'
    k2new.MAP[0] = opts.get('map', 'kv')
    ost = {"": "", "sc1": "sc0 sc1", "nt": "nt"}[opts.get("ost", "")]
    import k2 as k2mod
    k2mod.FINFUSE[0] = opts.get("finfuse", "1") == "1"
    k2mod.TOUCH[0] = opts.get("touch", "0") == "1"
    k2mod.CPF2[0] = opts.get("cpf2", "1") == "1"
    k2mod.PV2[0] = opts.get("pv2", "0") == "1"
    k2mod.SUMMODE[0] = opts.get("sum", "mfma"); k2mod.CVTMODE[0] = opts.get("cvt", "cvt")
    k2mod.DBGOUT[0] = opts.get("dbg", "0") == "1"
    fused = opts.get("fused", "1") == "1"
    import moe2, k3f
    if 'yts' in opts: k3f.YTS[:] = [int(x) for x in opts['yts'].split(',')]
    k3f.LOCAL[0] = opts.get('local', '0') == '1'
    k3f.SST[0] = {'ss': 'sc0 sc1', 'pl': '', 'nt': 'nt', 's0': 'sc0'}[opts.get('sst', 'ss')]
    k3f.WBL[0] = int(opts.get('wbl', 0))
    k3f.XB16[0] = opts.get('xb16', '1') == '1'
    moe2.WOFPF[0] = opts.get("wofpf", "0") == "1"
    if opts.get("nomoe", "0") == "1":
        import moe2, k3f
        moe2.NGD[0] = 0; k3f.YT0V[0] = 1000; k3f.NOYP[0] = True
    KN = "recurrent_scan__gqa_block_cached__moe_arch_mod__prompt_kernel"
    K2 = k2(name=(KN if fused else "k2_attn_kernel"), order=opts.get("order", "C"), prof=prof, ost=ost, fused=fused)
    if fused:
        K2 = (K2[0], K2[1], "; @launch grid=(256,1,1) block=(256,1,1) lds=163840")
        build(out, [K2])
    else:
        build(out, [K2, k3b(moe=True, prof=False, cpf=opts.get("cpf", "1") == "1")])
```

```python
from lib import *
MF = "v_mfma_f32_16x16x32_bf16"
SMF = "v_smfmac_f32_16x16x64_bf16"
S0 = 8; P0 = 72; FREEV = 104; NM = 136; Q0 = 152
KA = 216; VA = 220; DK = 228; DV = 232; L16 = 244; SIDX = 245; TMP = 246
LV = 104
AO = 0; AL = 128; AK = 144; AV = 176; AONE = 208; FREEA = 212
KSLOT = [81920, 114688, 65536]
VSLOT = [131072, 147456, 98304]
KBASE = 65536; VBASE = 98304
LDS_TOTAL = 163840
SRD_K, SRD_V = 8, 12
S_KV0 = 7; S_W4K = 30; S_KOFF = 32; S_LOOP = 33; S_VOFF = 39; S_WAVE = 37
CFG = dict(pv="d", sum="m", order="C", bar=7)

def Sreg(u, qs, kt):
    b = (u % 3) if CFG["pv"] == "s" else (u & 1)
    return S0 + b * 32 + qs * 8 + kt * 4
def Preg(u, qs): return P0 + (u & 1) * 16 + qs * 4
def Qf(qs, s): return Q0 + (qs * 4 + s) * 4
def Oacc(T, qs): return AO + (T * 4 + qs) * 4
def Kf(kt, s): return AK + (kt * 4 + s) * 4
def Vf(T): return AV + T * 4

def kld(half, i):
    kt, s = i >> 2, i & 3
    off = KSLOT[(half >> 1) % 3] - KBASE + (half & 1) * 8192 + kt * 4096
    return f"ds_read_b128 {ar(Kf(kt,s),4)}, v{KA+s} offset:{off}"
def vld(half, T, j):
    off = VSLOT[(half >> 1) % 3] - VBASE + (half & 1) * 8192 + j * (1024 if CFG["pv"] == "s" else 4096)
    return f"ds_read_b64_tr_b16 {ar(Vf(T)+2*j,2)}, v{VA+T} offset:{off}"
def qk(u, kt, s, qs, c0=None):
    D = Sreg(u, qs, kt)
    C = (vr(NM + qs * 4, 4) if c0 is None else c0) if s == 0 else vr(D, 4)
    return f"{MF} {vr(D,4)}, {ar(Kf(kt,s),4)}, {vr(Qf(qs,s),4)}, {C}"
def pv(u, T, qs, first=False):
    O = Oacc(T, qs)
    if CFG["pv"] == "s": return f"{SMF} {ar(O,4)}, {ar(Vf(T),4)}, {vr(Sreg(u,qs,0),8)}, v{SIDX}"
    return f"{MF} {ar(O,4)}, {ar(Vf(T),4)}, {vr(Preg(u,qs),4)}, {'0' if first else ar(O,4)}"
def sums(u, first=False):
    m = CFG["sum"]
    if m == "m": return [f"{MF} {ar(AL+qs*4,4)}, {ar(AONE,4)}, {vr(Preg(u,qs),4)}, {'0' if first else ar(AL+qs*4,4)}" for qs in range(4)]
    if m == "h": return [f"{SMF} {ar(AL+p*4,4)}, {ar(AONE,4)}, {vr(Preg(u,2*p),8)}, v{SIDX}" for p in range(2)]
    if m == "s": return [f"{SMF} {ar(AL+qs*4,4)}, {ar(AONE,4)}, {vr(Sreg(u,qs,0),8)}, v{SIDX}" for qs in range(4)]
    return []

def dma_k(tile):
    return [I("salu", f"s_add_u32 m0, s{S_W4K}, {KSLOT[tile % 3]}")] + \
           [I("vmem", f"buffer_load_dwordx4 v{DK+i}, s[{SRD_K}:{SRD_K+3}], s{S_KOFF} offen offset:{i*1024} lds") for i in range(4)]
def dma_v(tile):
    sel = (lambda i: i >> 1) if CFG["pv"] == "s" else (lambda i: i & 1)
    return [I("salu", f"s_add_u32 m0, s{S_W4K}, {VSLOT[tile % 3]}")] + \
           [I("vmem", f"buffer_load_dwordx4 v{DV+sel(i)}, s[{SRD_V}:{SRD_V+3}], s{S_VOFF} offen offset:{i*1024} lds") for i in range(4)]

def kv_init(kind, T):
    r = S_KOFF if kind == "K" else S_VOFF
    return [I("salu", f"s_add_u32 s{r}, s{S_KV0}, {T*16384}")] + (dma_k(T) if kind == "K" else dma_v(T))
def kv_addr_setup(em, t=9):
    e = em.e
    for s in range(4):
        e(f"v_add_u32 v{t}, {4*s}, v4\nv_xor_b32 v{t}, v{t}, v3\nv_lshlrev_b32 v{t}, 4, v{t}\nv_lshl_add_u32 v{t}, v3, 8, v{t}\nv_add_u32 v{KA+s}, {hex(KBASE)}, v{t}")
    e(f"v_bfe_u32 v{t}, v1, 2, 2\nv_and_b32 v{t+1}, 3, v1")
    if CFG["pv"] == "s":
        e(f"v_lshl_add_u32 v{t+2}, v4, 3, v{t}")
        e(f"v_and_b32 v{t+3}, 1, v4\nv_lshl_add_u32 v{t+3}, v{t+3}, 2, v{t}")
    else:
        e(f"v_lshl_add_u32 v{t+2}, v4, 2, v{t}\nv_and_b32 v{t+3}, 7, v{t+2}")
    e(f"v_lshlrev_b32 v{t+4}, 8, v{t+2}\nv_lshl_add_u32 v{t+4}, v{t+1}, 3, v{t+4}\nv_add_u32 v{t+4}, {hex(VBASE)}, v{t+4}")
    for T in range(8):
        e(f"v_xor_b32 v{t+5}, {T}, v{t+3}\nv_lshl_add_u32 v{VA+T}, v{t+5}, 5, v{t+4}")
    for i in range(4):
        e(f"v_add_u32 v{t}, {4*i}, v4\nv_xor_b32 v{t}, v{t}, v3\nv_lshlrev_b32 v{t}, 4, v{t}\nv_lshl_add_u32 v{t}, v4, 8, v{t}\nv_add_u32 v{DK+i}, s{S_W4K}, v{t}")
    for i in range(2):
        e(f"v_add_u32 v{t}, {4*i}, v4\nv_lshlrev_b32 v{t}, 1, v{t}\nv_xor_b32 v{t}, v{t}, v3\nv_lshlrev_b32 v{t}, 4, v{t}\nv_lshl_add_u32 v{t}, v4, 8, v{t}\nv_add_u32 v{DV+i}, s{S_W4K}, v{t}")
    m = CFG["sum"]
    if m == "h":
        e(f"v_bfe_u32 v{t}, v1, 1, 1\nv_lshrrev_b32 v{t+1}, 5, v1\nv_cmp_eq_u32 vcc, v{t}, v{t+1}\nv_mov_b32 v{t+2}, 0x3f803f80\ns_nop 0\nv_cndmask_b32 v{t+2}, 0, v{t+2}, vcc")
        e(f"v_and_b32 v{t}, 1, v1\nv_cmp_eq_u32 vcc, 1, v{t}\nv_mov_b32 v{t}, 0x44444444\nv_mov_b32 v{t+1}, 0xeeeeeeee\nv_cndmask_b32 v{SIDX}, v{t}, v{t+1}, vcc")
    else:
        e(f"v_mov_b32 v{t+2}, 0x3f803f80\nv_mov_b32 v{SIDX}, 0xdddddddd")
    for i in range(4): e(f"v_accvgpr_write_b32 a{AONE+i}, v{t+2}")

def step(em, u, do_qk=True, do_pv=True, do_sm=True, first_pv=False, ld_k=True, ld_v=True,
         dma=(), bar=None, post=(), bgs=()):
    mf = []; frees = []
    def add(t, fr=()): mf.append(t); frees.append(list(fr))
    sm = sums(u - 1, first_pv) if do_pv else []
    smpos = {4: (1, 3, 5, 7), 2: (3, 7), 0: ()}[len(sm)]
    for i in range(8):
        if do_qk:
            kt, qs = i >> 2, i & 3
            for s in range(4): add(qk(u + 1, kt, s, qs), [("K", kt * 4 + s)] if qs == 3 else [])
        if do_pv:
            for qs in range(4): add(pv(u - 1, i, qs, first_pv), [("V", i)] if qs == 3 else [])
            if i in smpos: add(sm.pop(0))
    n = len(mf)
    g0 = CFG["bar"] if bar else 0
    dsl = []
    for g, fr in enumerate(frees):
        for kind, i in fr:
            if kind == "K" and ld_k: dsl.append((g, kld(u + 2, i)))
            if kind == "V" and ld_v: dsl += [(g, vld(u, i, 0)), (g, vld(u, i, 1))]
    if ld_k and not do_qk:
        for i in range(8): dsl.append((min(i * n // 10, n - 1), kld(u + 2, i)))
    if ld_v and not do_pv:
        for i in range(8):
            for j in range(2): dsl.append((min(i * n // 10, n - 1), vld(u, i, j)))
    dsl.sort(key=lambda x: x[0])
    st = {"ds": [I("ds", t, max(g, g0)) for g, t in dsl]}
    if bar and not CFG.get("nobar"): st["bar"] = [I("wait", bar, g0, cost=8, bar=True)]
    if CFG.get("nodma"): dma = ()
    if CFG.get("nok"): st["ds"] = [it for it in st["ds"] if "b128" not in str(it["t"])]
    if CFG.get("nov"): st["ds"] = [it for it in st["ds"] if "tr_b16" not in str(it["t"])]
    if dma:
        m = len(dma)
        st["dma"] = [dict(d, g=max(d["g"], min(g0 + 3 + (k * (n - 10 - g0)) // m, n - 1))) for k, d in enumerate(dma)]
    if post: st["post"] = [dict(p, g=n - 2) for p in post]
    prio = ["bar", "exp", "cvt", "ds", "dma", "sum", "post"]
    pk = lambda: pack(n, st, prio, budget, bgs, em.gap, g0 + 1 if bar else 0)
    budget = 8 if n > 40 else 16
    if do_sm:
        sb = Sreg(u, 0, 0)
        st["exp"] = [I("exp", f"v_exp_f32 v{sb+x}, v{sb+x}", (x * (n - 4)) // 32, sm=True) for x in range(32)]
        est = [st["exp"][x]["g"] + 1 for x in range(32)]
        for itn in range(30):
            if CFG["pv"] == "d" and not CFG.get("nocvt"):
                st["cvt"] = [I("cvt", f"v_cvt_pk_bf16_f32 v{Preg(u,0)+j}, v{sb+2*j}, v{sb+2*j+1}", est[2 * j + 1]) for j in range(16)]
            if CFG["sum"] == "v":
                st["sum"] = [I("valu", f"v_add_f32 v{LV+(x>>3)}, v{LV+(x>>3)}, v{sb+x}", est[x]) for x in range(32)]
            packed, commit = pk()
            eg = [g for g, items in enumerate(packed) for it in items if it.get("sm")]
            new = [eg[x] + 1 for x in range(32)]
            if all(a <= b for a, b in zip(new, est)): break
            est = [max(a, b) for a, b in zip(new, est)]
        else: raise RuntimeError("no fixpoint")
        if any(it["k"] == "exp" for it in packed[n]): raise RuntimeError("exp in tail")
    else:
        packed, commit = pk()
    commit(); emit_packed(em, mf, packed)
    return packed

def body(em, b, kind="mid", xdma=None, post=(), bar=None, bgs=()):
    NT = 32
    for half in range(2):
        u = 2 * b + half
        kw = {}
        dma = []
        if half == 0 and (kind == "mid" or b + 3 < NT):
            dma = [I("salu", f"s_add_u32 s{S_KOFF}, s{S_KOFF}, 16384"), I("salu", f"s_bitset0_b32 s{S_KOFF}, 19")] + dma_k(b + 3)
        if half == 1 and (kind == "mid" or b + 2 < NT):
            dma = [I("salu", f"s_add_u32 s{S_VOFF}, s{S_VOFF}, 16384"), I("salu", f"s_bitset0_b32 s{S_VOFF}, 19")] + dma_v(b + 2)
        if xdma: dma = dma + xdma(u)
        if kind != "mid":
            if u == 0: kw["do_pv"] = False
            if u == 1: kw["first_pv"] = True
            if u >= 62: kw["ld_k"] = False
            if u == 63: kw["do_qk"] = False
        em.c(f"--- {kind} body {b} step {u}")
        step(em, u, dma=dma, bar=(bar if half == 0 else None), post=(post if half == 1 else ()), bgs=bgs, **kw)
    em.tags[("body", b)] = em.vm - 1

def rowmax_groups(em, v, t, op="v_max_f32"):
    e = em.e
    e(f"v_mov_b32 v{t}, v{v}\ns_nop 1\nv_permlane16_swap_b32 v{v}, v{t}\n{op} v{v}, v{v}, v{t}")
    e(f"v_mov_b32 v{t}, v{v}\ns_nop 1\nv_permlane32_swap_b32 v{v}, v{t}\n{op} v{v}, v{v}, v{t}")
```

```python
from lib import *
from layout import *
import core
from core import MF, L16, TMP, Q0, Qf, AO, AK, NM, dma_k, dma_v, kv_addr_setup, CFG
WQA = 234; DW = 238; XB = 240; QACC = 8
LN_LDS = 147456; LN_RS = 1168; LN_KEY = LN_LDS + 8 * LN_RS
WT = "sc0 sc1"
TG = 58
PA = 168; PG = 169; CLR = 170
BFO = 254
L2K = 248
def S4(s): return f"s[{s}:{s+3}]"

def dpp_reduce32(em, v, t, op="v_add_f32"):
    e = em.e
    for rot in (8, 4, 2, 1):
        e(f"s_nop 1\n{op}_dpp v{t}, v{v}, v{v} row_ror:{rot} row_mask:0xf bank_mask:0xf")
        v, t = t, v
    e(f"v_mov_b32 v{t}, v{v}\ns_nop 1\nv_permlane16_swap_b32 v{v}, v{t}\n{op} v{v}, v{v}, v{t}")
def bf16r(em, dst, src): em.e(f"v_cvt_pk_bf16_f32 v{dst}, v{src}, v{src}\nv_lshlrev_b32 v{dst}, 16, v{dst}")

def code_prefetch(em, start, end, dst_v, tmp_v, uniq, forward):
    t = f"s_getpc_b64 s[96:97]\nPC_{uniq}:\n"
    if forward: t += f"s_add_u32 s96, s96, {start}-PC_{uniq}\ns_addc_u32 s97, s97, 0\n"
    else: t += f"s_sub_u32 s96, s96, PC_{uniq}-{start}\ns_subb_u32 s97, s97, 0\n"
    t += f"s_lshl_b32 s{S_T}, s{S_HEAD}, 2\ns_add_u32 s{S_T}, s{S_T}, s{S_WAVE}\ns_min_u32 s{S_T}, s{S_T}, (({end}-{start})>>10)-1\ns_lshl_b32 s{S_T}, s{S_T}, 10\n"
    t += f"v_lshlrev_b32 v{tmp_v}, 4, v1\nv_add_u32 v{tmp_v}, s{S_T}, v{tmp_v}\n"
    t += f"global_load_dwordx4 v[{dst_v}:{dst_v+3}], v{tmp_v}, s[96:97]"
    return em.vmem(t)

def wq_adv(d):
    W = 576 * 8192
    return f"s_add_u32 s{S_WQOFF}, s{S_WQOFF}, {d}\ns_sub_u32 s{S_T2}, s{S_WQOFF}, {W}\ns_cselect_b32 s{S_WQOFF}, s{S_WQOFF}, s{S_T2}"
def wq_lds(sg): return (65536 + 8192 * sg) % 147456

def setup(em):
    e = em.e
    e(f"s_lshl_b32 s{S_W4K}, s{S_WAVE}, 12\ns_lshl_b32 s{S_W1K}, s{S_WAVE}, 10\nv_lshlrev_b32 v{L16}, 4, v1")
    kv_addr_setup(em, 9)
    e("v_bfe_u32 v9, v1, 2, 2\nv_and_b32 v10, 3, v1\nv_lshl_add_u32 v11, v4, 2, v9\nv_and_b32 v12, 7, v11")
    e("v_lshrrev_b32 v14, 1, v10\nv_xor_b32 v14, v14, v12\nv_and_b32 v15, 1, v10\nv_lshlrev_b32 v15, 4, v15\nv_lshl_add_u32 v15, v11, 8, v15\nv_add_u32 v15, 0x10000, v15")
    for s in range(4): e(f"v_xor_b32 v16, {2*s}, v14\nv_lshl_add_u32 v{WQA+s}, v16, 5, v15")
    e(f"s_lshl_b32 s{S_T}, s{S_G}, 4\ns_lshl_b32 s{S_T2}, s{S_WAVE}, 2\ns_add_u32 s{S_T}, s{S_T}, s{S_T2}\ns_lshr_b32 s29, s{S_HEAD}, 2")
    for qs in range(4):
        e(f"s_add_u32 s28, s29, {qs}\ns_and_b32 s28, s28, 3\ns_add_u32 s28, s28, s{S_T}")
        e(f"s_mul_i32 s28, s28, 18432\nv_add_u32 v{XB+qs}, s28, v{L16}")
    e(f"s_lshl_b32 s28, s{S_G}, 5\ns_add_u32 s28, s28, s{S_HEAD}\ns_lshl2_add_u32 s28, s28, s{S_WAVE}\ns_lshl_b32 s{S_OB}, s28, 14\ns_add_u32 s{S_OB}, s{S_OB}, {hex(WS_OF)}")
    c = f2u(128 ** -0.5 * 1.4426950408889634)
    e(f"s_mov_b32 s{S_C}, {hex(c)}\ns_mov_b32 s{S_C+1}, {hex(c)}\ns_mov_b32 s{S_THR}, 0x5f800000\ns_mov_b32 s{S_PASS}, 0")
    e(f"s_lshr_b32 s{S_T}, s{S_HEAD}, 1\ns_lshl_b32 s{S_T}, s{S_T}, 19")
    e(f"s_add_u32 s66, s66, s{S_T}\ns_addc_u32 s67, s67, 0\ns_add_u32 s68, s68, s{S_T}\ns_addc_u32 s69, s69, 0")
    srd(em, SRD_K, 66, 67, 524288)
    srd(em, SRD_V, 68, 69, 524288)
    srd(em, SRD_WO, 72, 73, 4096 * 1152)
    srd(em, SRD_OUT, 84, 85, 2048 * 1152)
    e(f"s_cmp_lt_u32 s2, {NGD}\ns_cselect_b32 s28, {576*9216}, 0")
    srd(em, SRD_G, 78, 79, "s28")
    srd(em, SRD_U, 80, 81, "s28")
    srd(em, SRD_D, 82, 83, "s28")
    e(f"s_mul_i32 s28, s{S_G}, 18\ns_add_u32 s28, s28, s{S_HEAD}")
    e(f"s_lshl_b32 s{S_GOFF}, s28, 6\ns_mul_i32 s29, s{S_WAVE}, {16*9216}\ns_add_u32 s{S_GOFF}, s{S_GOFF}, s29")
    e(f"s_mul_i32 s{S_DOFF}, s28, 36864\ns_add_u32 s{S_DOFF}, s{S_DOFF}, s{S_W1K}")
    e(f"s_cmp_lt_u32 s2, {NGD}\ns_cselect_b32 s{S_FB}, s{S_W1K}, 0x30000")
    e(f"s_lshr_b32 s28, s{S_HEAD}, 2\ns_mul_i32 s{S_WOB}, s28, {512*1152}\ns_and_b32 s28, s{S_HEAD}, 3\ns_mul_i32 s28, s28, 288\ns_add_u32 s{S_WOB}, s{S_WOB}, s28")

def front(em, kname, stamp):
    e = em.e
    NU = CFG.get("nu", 12)
    NU0 = CFG.get("nu0", 4)
    e("s_cmp_ge_u32 s2, 256\ns_cbranch_scc1 K_END\ns_mov_b32 s100, 0")
    e("s_load_dwordx16 s[64:79], s[0:1], 0\ns_load_dwordx8 s[80:87], s[0:1], 64\ns_load_dwordx2 s[88:89], s[0:1], 96")
    e(f"s_lshr_b32 s{S_HEAD}, s2, 3\ns_and_b32 s{S_G}, s2, 7")
    e(f"s_mul_i32 s{S_ROT}, s{S_G}, {9 * CFG.get('rot', 1)}\ns_lshr_b32 s{S_ROT}, s{S_ROT}, 2")
    e(f"s_lshl_b32 s3, s{S_G}, 8\ns_lshl_b32 s28, s{S_HEAD}, 3\ns_add_u32 s3, s3, s28")
    e("v_lshrrev_b32 v5, 5, v0\nv_add_u32 v5, s3, v5\nv_and_b32 v6, 31, v0")
    e("v_mul_u32_u24 v7, 0x480, v5\nv_lshl_add_u32 v7, v6, 2, v7")
    e("v_and_b32 v1, 63, v0\nv_lshrrev_b32 v2, 6, v0\nv_lshlrev_b32 v8, 2, v6")
    e(f"v_readfirstlane_b32 s{S_WAVE}, v2\nv_and_b32 v3, 15, v1\nv_lshrrev_b32 v4, 4, v1")
    X, W, F = 18, 28, 40
    e("s_waitcnt lgkmcnt(0)")
    stamp(em)
    srd(em, SRD_X, 64, 65, 2048 * 1152)
    for i in range(9): e(f"buffer_load_dword v{X+i}, v7, {S4(SRD_X)}, 0 offen offset:{i*128}")
    e(f"s_lshl_b32 s28, s{S_G}, 9\ns_add_u32 s28, s28, {hex(WS_EP)}\ns_load_dwordx2 s[6:7], s[88:89], s28")
    srd(em, SRD_WR, 76, 77, 1152)
    for i in range(9): e(f"buffer_load_dword v{W+i}, v8, {S4(SRD_WR)}, 0 offen offset:{i*128}")
    srd(em, SRD_WS, 88, 89, WS_SIZE)
    e(f"s_lshr_b32 s{S_PUB}, s3, 4\ns_mul_i32 s{S_PUB}, s{S_PUB}, 18432\ns_and_b32 s29, s3, 15\ns_lshl_b32 s29, s29, 4\ns_add_u32 s{S_PUB}, s{S_PUB}, s29")
    NT0 = 0
    if CFG.get("touch0", 1):
        e(f"v_lshrrev_b32 v9, 1, v0\nv_lshlrev_b32 v9, 8, v9\nv_and_b32 v10, 1, v0\nv_lshl_add_u32 v9, v10, 6, v9\ns_add_u32 s29, s{S_PUB}, {hex(WS_XA)}\nv_add_u32 v9, s29, v9")
        e(f"s_add_u32 s28, s28, {(256 - 144*64) & 0xffffffff:#x}\nv_lshlrev_b32 v10, 6, v0\nv_add_u32 v10, s28, v10\nv_cmp_lt_u32 vcc, 143, v0\ns_lshl_b32 s29, s3, 2\ns_add_u32 s29, s29, {hex(WS_XA + WS_KEY)}\nv_cndmask_b32 v9, v9, v10, vcc")
        e(f"v_mov_b32 v10, s29\nv_cmp_lt_u32 vcc, 147, v0\ns_nop 1\nv_cndmask_b32 v9, v9, v10, vcc")
        e(f"buffer_load_dword v176, v9, {S4(SRD_WS)}, 0 offen sc1")
        NT0 = 1
    code_prefetch(em, kname, "K_HOT_END", 172, 11, "a", False)
    srd(em, SRD_WQ, 70, 71, 576 * 8192)
    for i in range(2):
        e(f"v_add_u32 v9, {4*i}, v4\nv_lshlrev_b32 v10, 1, v9\nv_xor_b32 v10, v10, v3\nv_lshlrev_b32 v10, 4, v10\nv_lshl_add_u32 v{DW+i}, v9, 13, v10")
    e(f"v_subrev_u32 v{DW+1}, 1024, v{DW+1}")
    e(f"s_cmp_eq_u32 s{S_WAVE}, 0\ns_cbranch_scc1 F_NOWQ")
    e(f"s_sub_u32 s28, s{S_WAVE}, 1\ns_lshl_b32 s{S_MX}, s28, 11\ns_lshl_b32 s28, s28, 16\ns_lshl_b32 s{S_WQOFF}, s{S_HEAD}, 8\ns_add_u32 s{S_WQOFF}, s{S_WQOFF}, s28")
    e(f"s_lshl_b32 s28, s{S_ROT}, 18\ns_add_u32 s{S_WQOFF}, s{S_WQOFF}, s28")
    def wq_pre(k0, k1):
        for k in range(k0, k1):
            e(f"s_add_u32 m0, s{S_MX}, {65536 + 6144*k}\ns_nop 0")
            for i in range(2): e(f"buffer_load_dwordx4 v{DW+i}, {S4(SRD_WQ)}, s{S_WQOFF} offen offset:{i*1024} lds")
            e(wq_adv(3 * 65536))
    wq_pre(0, NU0)
    em.label("F_NOWQ")
    stamp(em, 14)
    e(f"s_getreg_b32 s{S_XCC}, hwreg(HW_REG_XCC_ID, 0, 4)")
    srd(em, SRD_DBG, 86, 87, 256)
    e(f"v_and_b32 v66, 7, v1\nv_mul_u32_u24 v67, {LN_RS}, v66\nv_lshrrev_b32 v68, 5, v1\nv_lshl_add_u32 v67, v68, 6, v67")
    e(f"v_bfe_u32 v69, v1, 3, 2\nv_lshl_add_u32 v67, v69, 3, v67\ns_lshl_b32 s28, s{S_WAVE}, 7\ns_add_u32 s28, s28, {hex(LN_LDS)}\nv_add_u32 v{PA}, s28, v67")
    e(f"v_lshlrev_b32 v70, 10, v68\nv_lshl_add_u32 v71, v69, 4, v66\nv_lshl_add_u32 v{PG}, v71, 4, v70")
    e("s_mov_b32 s76, 0x3ae38e39\ns_mov_b32 s77, 0x3727c5ac\ns_mov_b32 s75, 0xffff0000")
    e(f"s_cmp_eq_u32 s{S_WAVE}, 0\ns_cbranch_scc0 F_W1\ns_waitcnt vmcnt({1 + NT0})")
    em.label("F_W1")
    e(f"s_waitcnt vmcnt({1 + NT0 + 2*NU0})")
    stamp(em, 15)
    for i in range(9): e(f"v_lshlrev_b32 v{F+2*i}, 16, v{X+i}\nv_and_b32 v{F+2*i+1}, s75, v{X+i}")
    A0, A1, A2, A3 = 60, 61, 62, 63
    e(f"v_add_f32 v{A0}, v{F}, v{F+1}\nv_add_f32 v{A1}, v{F+2}, v{F+3}")
    for i in range(4, 18, 2): e(f"v_add_f32 v{A0}, v{A0}, v{F+i}\nv_add_f32 v{A1}, v{A1}, v{F+i+1}")
    e(f"v_add_f32 v{A0}, v{A0}, v{A1}")
    dpp_reduce32(em, A0, A1)
    e(f"v_mul_f32 v{A0}, s76, v{A0}")
    e(f"v_sub_f32 v{A2}, v{F}, v{A0}\nv_mul_f32 v{A1}, v{A2}, v{A2}\nv_sub_f32 v{A2}, v{F+1}, v{A0}\nv_mul_f32 v{A3}, v{A2}, v{A2}")
    for i in range(2, 18, 2):
        e(f"v_sub_f32 v{A2}, v{F+i}, v{A0}\nv_sub_f32 v64, v{F+i+1}, v{A0}\nv_fmac_f32 v{A1}, v{A2}, v{A2}\nv_fmac_f32 v{A3}, v64, v64")
    e(f"v_add_f32 v{A1}, v{A1}, v{A3}")
    dpp_reduce32(em, A1, A2)
    e(f"v_mul_f32 v{A1}, s76, v{A1}")
    bf16r(em, A0, A0); bf16r(em, A1, A1)
    e(f"v_add_f32 v{A1}, s77, v{A1}")
    bf16r(em, A1, A1)
    e(f"v_sqrt_f32 v{A1}, v{A1}\ns_nop 0")
    bf16r(em, A1, A1)
    e(f"v_rcp_f32 v{A2}, v{A1}\nv_mov_b32 v{A3}, 0")
    e(f"v_lshrrev_b32 v69, 5, v0\nv_mul_u32_u24 v65, {LN_RS}, v69\nv_lshl_add_u32 v65, v6, 2, v65\nv_add_u32 v65, {hex(LN_LDS)}, v65")
    for i in range(9):
        a, b = F + 2 * i, F + 2 * i + 1
        e(f"v_sub_f32 v{a}, v{a}, v{A0}\nv_sub_f32 v{b}, v{b}, v{A0}")
        e(f"v_cvt_pk_bf16_f32 v66, v{a}, v{b}")
        e(f"v_lshlrev_b32 v{a}, 16, v66\nv_and_b32 v{b}, s75, v66")
        e(f"v_mul_f32 v67, v{a}, v{A2}\nv_mul_f32 v68, v{b}, v{A2}")
        e(f"v_fma_f32 v{a}, -v67, v{A1}, v{a}\nv_fma_f32 v{b}, -v68, v{A1}, v{b}")
        e(f"v_fmac_f32 v67, v{a}, v{A2}\nv_fmac_f32 v68, v{b}, v{A2}")
        e(f"v_cvt_pk_bf16_f32 v{X+i}, v67, v68")
        e(f"v_dot2_f32_bf16 v{A3}, v{X+i}, v{W+i}, v{A3}")
        e(f"ds_write_b32 v65, v{X+i} offset:{i*128}")
    e("s_nop 2")
    dpp_reduce32(em, A3, A2)
    bf16r(em, A3, A3)
    e(f"v_ashrrev_i32 v66, 31, v{A3}\nv_or_b32 v66, 0x80000000, v66\nv_xor_b32 v{A3}, v{A3}, v66\nv_and_b32 v{A3}, s75, v{A3}")
    e(f"v_sub_u32 v66, 0xffff, v5\nv_or_b32 v{A3}, v{A3}, v66")
    e(f"v_lshlrev_b32 v66, 2, v69\nv_add_u32 v66, {hex(LN_KEY)}, v66\nds_write_b32 v66, v{A3}")
    e("v_and_b32 v64, 7, v1\nv_lshlrev_b32 v64, 2, v64")
    e("s_waitcnt lgkmcnt(0)\ns_barrier")
    stamp(em)
    e(f"s_cmp_eq_u32 s{S_WAVE}, 0\ns_cbranch_scc0 F_OTHER")
    G = 72
    def stores(base, pol, waits):
        t = f"s_add_u32 s28, s{S_PUB}, {hex(base + WS_XNF)}\n"
        for i in range(9):
            if waits: t += f"s_waitcnt lgkmcnt({9-i})\n"
            t += f"buffer_store_dwordx4 {vr(G+4*i,4)}, v{PG}, {S4(SRD_WS)}, s28 offen offset:{(i&1)*2048} {pol}\n"
            if i & 1: t += "s_add_u32 s28, s28, 4096\n"
        t += f"s_lshl_b32 s28, s3, 2\ns_add_u32 s28, s28, {hex(base + WS_KEY)}\n" + ("s_waitcnt lgkmcnt(0)\n" if waits else "")
        return t + f"buffer_store_dword v65, v64, {S4(SRD_WS)}, s28 offen {pol}\n"
    for i in range(9): e(f"ds_read2_b64 {vr(G+4*i,4)}, v{PA} offset0:{i*16} offset1:{i*16+4}")
    e(f"v_add_u32 v65, {hex(LN_KEY)}, v64\nds_read_b32 v65, v65")
    e(stores(WS_XA, "", True))
    e("s_mul_i32 s6, s6, 0x9e3779b1\ns_add_u32 s6, s6, 0x7f4a7c15\ns_mul_i32 s7, s7, 0x85ebca6b\ns_add_u32 s7, s7, 0x165667b1")
    e(f"s_and_b32 s29, s6, -16\ns_or_b32 s29, s29, s{S_XCC}\nv_mov_b32 v{TG}, s29\nv_mov_b32 v{TG+1}, s7\ns_lshl_b32 s29, s{S_HEAD}, 3\nv_mov_b32 v61, s29")
    e(f"s_lshl_b32 s28, s{S_G}, 9\ns_add_u32 s28, s28, {hex(WS_EP + 256)}")
    e("s_waitcnt vmcnt(0)")
    e(f"s_mov_b64 exec, 1\nbuffer_store_dwordx2 {vr(TG,2)}, v61, {S4(SRD_WS)}, s28 offen\ns_mov_b64 exec, -1")
    stamp(em, 16)
    em.label("F_OTHER")
    setup(em)
    e(f"s_lshl_b32 s28, s{S_G}, 9\ns_lshr_b32 s29, s{S_HEAD}, 2\ns_and_b32 s{S_T}, s{S_HEAD}, 3")
    e(f"s_lshl_b32 s{S_T2}, s29, 6\ns_add_u32 s{S_T2}, s{S_T2}, s28\ns_lshl_b32 s94, s{S_T}, 2\ns_add_u32 s{S_T2}, s{S_T2}, s94\ns_add_u32 s{S_T2}, s{S_T2}, {hex(WS_OFLAG)}")
    e(f"v_lshlrev_b32 v{CLR}, 4, v1\nv_add_u32 v{CLR}, s{S_T2}, v{CLR}")
    e(f"s_lshl_b32 s{S_T2}, s{S_T}, 7\ns_add_u32 s{S_T2}, s{S_T2}, s28\ns_lshl_b32 s94, s29, 2\ns_add_u32 s{S_T2}, s{S_T2}, s94\ns_add_u32 s{S_T2}, s{S_T2}, {hex(WS_PFLAG - 128)}")
    e(f"v_lshlrev_b32 v61, 5, v1\nv_add_u32 v61, s{S_T2}, v61\nv_cmp_lt_u32 vcc, 3, v1\ns_nop 1\nv_cndmask_b32 v{CLR}, v{CLR}, v61, vcc")
    e(f"s_lshl_b32 s{S_T2}, s{S_G}, 5\ns_add_u32 s{S_T2}, s{S_T2}, {hex(WS_CAND - 32)}\ns_cmp_eq_u32 s{S_HEAD}, 0\ns_cselect_b32 s{S_T2}, s{S_T2}, {hex(OOB - 0x1000)}")
    e(f"v_lshlrev_b32 v61, 2, v1\nv_add_u32 v61, s{S_T2}, v61\nv_cmp_lt_u32 vcc, 7, v1\ns_nop 1\nv_cndmask_b32 v{CLR}, v{CLR}, v61, vcc")
    e(f"s_cmp_eq_u32 s2, 0\ns_mov_b32 s{S_T2}, {hex(OOB - 0x4000)}\ns_cselect_b32 s{S_T2}, {hex(WS_CY - 16*128)}, s{S_T2}")
    e(f"v_lshlrev_b32 v61, 7, v1\nv_add_u32 v61, s{S_T2}, v61\nv_cmp_lt_u32 vcc, 15, v1\ns_nop 1\nv_cndmask_b32 v{CLR}, v{CLR}, v61, vcc")
    e(f"v_mov_b32 v61, {hex(OOB)}\nv_cmp_lt_u32 vcc, 17, v0\nv_mov_b32 v{CLR+1}, 0\ns_nop 0\nv_cndmask_b32 v{CLR}, v{CLR}, v61, vcc")
    e(f"s_cmp_eq_u32 s{S_WAVE}, 0\ns_cbranch_scc1 F_JOIN")
    TH = CFG.get("wqth", 0)
    for k in range(NU0, NU):
        if TH: e(f"s_waitcnt vmcnt({TH})")
        wq_pre(k, k + 1)
    stamp(em, 16)
    em.label("F_JOIN")
    e(f"s_lshl_b32 s{S_MX}, s{S_WAVE}, 11\ns_lshl_b32 s28, s{S_WAVE}, 16\ns_lshl_b32 s{S_WQOFF}, s{S_HEAD}, 8\ns_add_u32 s{S_WQOFF}, s{S_WQOFF}, s28\ns_lshl_b32 s28, s{S_ROT}, 18\ns_add_u32 s{S_WQOFF}, s{S_WQOFF}, s28")
    e(wq_adv(3 * NU * 65536))
    e(f"v_mov_b32 v{BFO}, {hex(OOB)}\ns_lshl_b32 s28, s{S_G}, 5\ns_add_u32 s29, s28, s{S_HEAD}\ns_cmp_eq_u32 s{S_WAVE}, 0\ns_cselect_b32 s29, s29, {hex(OOB)}\nv_writelane_b32 v{BFO}, s29, 0")
    e(f"s_or_b32 s29, s{S_XCC}, 0x20\nv_mov_b32 v{BFO+1}, s29")
    e(f"s_cmp_eq_u32 s{S_WAVE}, 0\ns_cbranch_scc1 F_W0P")
    e("s_waitcnt vmcnt(0)\ns_branch F_BAR2")
    em.label("F_W0P")
    e(f"s_lshl_b32 s28, s{S_G}, 9\ns_add_u32 s28, s28, {hex(WS_EP + 256)}\nv_and_b32 v61, 31, v1\nv_lshlrev_b32 v61, 3, v61\ns_mov_b32 s{S_T2}, 0\nv_mov_b32 v60, 3")
    em.label("F_POLL")
    e(f"buffer_load_dwordx2 v[62:63], v61, {S4(SRD_WS)}, s28 offen {CFG.get('pollsc', WT)}\ns_waitcnt vmcnt(0)")
    e(f"v_cmp_ne_u64 vcc, v[62:63], {vr(TG,2)}\ns_cbranch_vccnz F_NOTYET")
    em.label("F_GO")
    em.cold.append(f"F_NOTYET:\ns_add_u32 s{S_T2}, s{S_T2}, 1\ns_and_b32 s29, s{S_T2}, 15\ns_cbranch_scc1 F_NOB\n"
                   f"s_bitcmp1_b32 s{S_T2}, 30\ns_cbranch_scc1 F_BSENT\ns_bitset1_b32 s{S_T2}, 30\ns_mov_b32 s{S_T}, s28\n" + stores(0, WT, False) +
                   f"buffer_store_dword v{CLR+1}, v{CLR}, {S4(SRD_WS)}, 0 offen {WT}\ns_mov_b32 s28, s{S_T}\nv_mov_b32 v{CLR}, {hex(OOB)}\n"
                   f"s_waitcnt vmcnt(0)\nbuffer_store_byte v{BFO+1}, v{BFO}, {S4(SRD_DBG)}, 0 offen {WT}\nF_BSENT:\n"
                   f"s_lshl_b32 s29, s{S_G}, 5\nbuffer_load_dword v62, v64, {S4(SRD_DBG)}, s29 offen {WT}\ns_waitcnt vmcnt(0)\n"
                   f"v_and_b32 v63, 0x20202020, v62\nv_cmp_ne_u32 vcc, 0x20202020, v63\ns_cbranch_vccnz F_NOB\n"
                   f"s_or_b32 s29, s{S_XCC}, 0x20\ns_mul_i32 s29, s29, 0x01010101\nv_cmp_ne_u32 vcc, s29, v62\nv_mov_b32 v60, 0\ns_cbranch_vccnz F_GO\nv_mov_b32 v60, 1\ns_branch F_GO\n"
                   f"F_NOB:\ns_sleep {CFG.get('psl', 1)}\ns_branch F_POLL")
    e(f"v_mov_b32 v61, {LN_KEY + 64}\nds_write_b32 v61, v60")
    e(f"s_cmp_eq_u32 s{S_HEAD}, 0\ns_cbranch_scc0 F_NOEP")
    e(f"v_mov_b32 v62, s6\nv_mov_b32 v63, s7\nv_mov_b32 v61, 0\ns_sub_u32 s28, s28, 256\ns_mov_b64 exec, 1\nbuffer_store_dwordx2 v[62:63], v61, {S4(SRD_WS)}, s28 offen\ns_mov_b64 exec, -1")
    em.label("F_NOEP")
    e("s_waitcnt lgkmcnt(0)")
    em.label("F_BAR2")
    stamp(em, 17)
    e("s_barrier")
    em.vm = 0; em.ds_done = em.ds - 1

def umax_items(src, m, t):
    r = []
    if len(src) == 4:
        r += [I("valu", f"v_max3_u32 v{m}, v{src[0]}, v{src[1]}, v{src[2]}"), I("valu", f"v_max_u32 v{m}, v{m}, v{src[3]}", d=0)]
        cur = m
    else: cur = src[0]
    for rot, dst in ((8, t), (4, m), (2, t), (1, m)):
        r.append(I("valu", f"v_max_u32_dpp v{dst}, v{cur}, v{cur} row_ror:{rot} row_mask:0xf bank_mask:0xf", w=2)); cur = dst
    for sw in ("v_permlane16_swap_b32", "v_permlane32_swap_b32"):
        r += [I("valu", f"v_mov_b32 v{t}, v{m}", d=0), I("valu", f"{sw} v{m}, v{t}", w=2), I("valu", f"v_max_u32 v{m}, v{m}, v{t}", d=0)]
    return r
def top8_items(keys, m, t, acc, sel, to_sgpr=None):
    r = [I("valu", f"v_mov_b32 v{acc}, 0"), I("salu", f"s_mov_b32 s{S_M}, 0x01010101\ns_mov_b32 s{S_M+1}, 0x01010101", d=0)]
    for k in range(8):
        r += umax_items(keys, m, t)
        r.append(I("valu", f"v_add_u32 v{acc}, v{acc}, v{m}", d=0))
        if k < 7:
            for x in keys: r.append(I("valu", f"v_sub_u32 v{x}, v{x}, v{m}", d=0))
        r.append(I("valu", f"v_cndmask_b32 v{sel}, v{sel}, v{acc}, s[{S_M}:{S_M+1}]", d=0))
        if to_sgpr is not None: r.append(I("valu", f"v_readfirstlane_b32 s{to_sgpr+k}, v{acc}", w=1))
        if k < 7: r.append(I("salu", f"s_lshl_b64 s[{S_M}:{S_M+1}], s[{S_M}:{S_M+1}], 1"))
    return r

def qproj(em, stamp):
    e = em.e
    NK = 18; NU = CFG.get("nu", 12); AHEAD = CFG.get('ahead', 7)
    assert (3 * NU) % 4 == 0
    W0 = 3 * NU // 4
    def xn_ld(sg):
        if sg == 0: r = [I("salu", f"s_lshl_b32 s28, s{S_ROT}, 10\ns_add_u32 s28, s28, s{S_XB}\ns_add_u32 s6, s{S_XB}, 18432")]
        else: r = [I("salu", f"s_add_u32 s28, s28, 1024\ns_cmp_lt_u32 s28, s6\ns_cselect_b32 s28, s28, s{S_XB}")]
        assert WS_XNF == 0
        return r + [I("vmem", f"buffer_load_dwordx4 {ar(AO+((sg&7)*4+qs)*4,4)}, v{XB+qs}, {S4(SRD_WS)}, s28 offen {CFG.get('xnsc', WT).replace('pl', '')}", tag=("xn", sg)) for qs in range(4)]
    def wq_items(sg):
        return [I("salu", f"s_add_u32 m0, s{S_MX}, {wq_lds(sg)}")] + \
               [I("vmem", f"buffer_load_dwordx4 v{DW+i}, {S4(SRD_WQ)}, s{S_WQOFF} offen offset:{i*1024} lds", tag=("wq", sg)) for i in range(2)] + \
               [I("salu", wq_adv(4 * 65536))]
    def kv_init(kind, T):
        r = core.kv_init(kind, T); r[-1] = dict(r[-1], tag=(kind, T)); return r
    def aset(sg): return AK + (sg & 1) * 32
    def abase(sg): return 65536 if sg < 8 else (131072 if sg < 10 else 0)
    def a_ld(sg):
        return [f"ds_read_b64_tr_b16 {ar(aset(sg)+t*4+2*j,2)}, v{WQA+(t>>1)} offset:{wq_lds(sg) - abase(sg) + j*4096 + 8*(t&1)}" for t in range(8) for j in range(2)]
    e(f"s_lshl_b32 s{S_KV0}, s{S_G}, {16 if CFG.get('kvrot', 1) else 31}")
    if not CFG.get('kvrot', 1): e(f"s_mov_b32 s{S_KV0}, 0")
    e(f"v_mov_b32 v{TMP}, {LN_KEY + 64}\nds_read_b32 v{TMP}, v{TMP}\ns_mov_b32 s{S_XB}, {hex(WS_XA)}\ns_mov_b32 s{S_T2}, 3")
    em.label("Q_START")
    emit_items(em, xn_ld(0))
    e(f"s_waitcnt lgkmcnt(0)\nv_readfirstlane_b32 s{S_MODE}, v{TMP}")
    for t in a_ld(0): em.ds_load(t)
    e(f"s_cmp_lt_u32 s{S_MODE}, s{S_T2}\ns_cbranch_scc1 Q_REDO")
    em.cold.append(f"Q_REDO:\ns_mov_b32 s{S_XB}, 0\ns_mov_b32 s{S_T2}, 0\ns_waitcnt vmcnt(0) lgkmcnt(0)\ns_branch Q_START")
    emit_items(em, xn_ld(1) + xn_ld(2))
    KY = NM
    tk = BG([I("salu", f"s_lshl_b32 s29, s{S_G}, 10\ns_add_u32 s29, s29, s{S_XB}"),
             I("vmem", f"s_add_u32 s29, s29, {hex(WS_KEY)}\nbuffer_load_dwordx4 {vr(KY,4)}, v{L16}, {S4(SRD_WS)}, s29 offen {WT}", tag="keys")])
    items = top8_items([KY, KY + 1, KY + 2, KY + 3], KY + 4, KY + 5, KY + 6, KY + 7)
    items[2] = dict(items[2], wait=["keys"], ag=em.gap + 48)
    tk.add(items)
    tk.add([I("valu", f"v_lshlrev_b32 v{KY}, 2, v1\nv_mov_b32 v{KY+1}, {hex(OOB)}"), I("valu", "v_cmp_lt_u32 vcc, 7, v1"),
            I("valu", f"v_cndmask_b32 v{KY}, v{KY}, v{KY+1}, vcc", w=2),
            I("salu", f"s_lshl_b32 s29, s{S_G}, 5\ns_add_u32 s29, s29, {hex(WS_CAND)}"),
            I("salu", f"s_add_u32 s{S_T}, s{S_HEAD}, s{S_WAVE}\ns_cmp_eq_u32 s{S_T}, 0\ns_cselect_b32 s29, s29, {hex(OOB)}"),
            I("vmem", f"buffer_store_dword v{KY+7}, v{KY}, {S4(SRD_WS)}, s29 offen {WT}")])
    tk.q[-1]["ag"] = em.gap + 32 * CFG.get("pubstep", 13) + 16
    pub = BG(start=em.gap + 32 * CFG.get("pubstep", 13))
    pub.add([I("vmem", f"buffer_store_dword v{CLR+1}, v{CLR}, {S4(SRD_WS)}, 0 offen {WT}", tag="clr")])
    tk.q[-1]["wait"] = ["clr"]; tk.q[-1]["ag"] += 80
    pub.add([I("ds", f"ds_read2_b64 {vr(Q0+4*k,4)}, v{PA} offset0:{k*64} offset1:{k*64+4}") for k in range(3)])
    pub.add([I("salu", f"s_lshl1_add_u32 s{S_PUB}, s{S_W1K}, s{S_PUB}")])
    for k in range(3):
        pre = "" if k == 0 else f"s_add_u32 s{S_PUB}, s{S_PUB}, 8192\n"
        if k == 2: pre += f"s_cmp_eq_u32 s{S_WAVE}, 0\ns_cselect_b32 s{S_PUB}, s{S_PUB}, {hex(OOB)}\n"
        pub.add([I("vmem", f"{pre}buffer_store_dwordx4 {vr(Q0+4*k,4)}, v{PG}, {S4(SRD_WS)}, s{S_PUB} offen {WT}", needs=[f"v{Q0+4*k}"], d=6)])
    nx = 3; nw = W0
    bl = [int(x) for x in str(CFG.get("bars", f"{W0-1}.8.12" if W0 < 9 else "8.12")).split(".")]
    assert bl[0] == W0 - 1
    bars = {st_: (bl[k + 1] if k + 1 < len(bl) else NK - 1) for k, st_ in enumerate(bl)}
    kv_at = dict(zip([int(x) for x in str(CFG.get("kvat", "8.9.13")).split(".")], [("K", 0), ("K", 1), ("V", 0)]))
    if not CFG.get("defer", 1): kv_at.update({10: ("V", 1), 11: ("K", 2)})
    for st_, need in zip(kv_at, (4, 8, 10)): assert any(need <= b_ <= st_ for b_ in bl), (st_, need)
    WR2 = CFG.get("wr2", 3)
    for sg in range(NK):
        mf = []
        for t in range(8):
            for qs in range(4):
                acc = QACC + (t * 4 + qs) * 4
                mf.append(f"{MF} {vr(acc,4)}, {ar(aset(sg)+t*4,4)}, {ar(AO+((sg&7)*4+qs)*4,4)}, {'0' if sg == 0 else vr(acc,4)}")
        mf[0] = (mf[0], [("xn", sg)])
        st = {}
        g0 = 0
        if sg in bars:
            g0 = 2
            last = bars[sg]
            st["bar"] = [I("wait", (lambda last=last: f"s_waitcnt vmcnt({em.vm_n(em.tags[('wq', last)])}) lgkmcnt(0)\ns_barrier"), g0 - 1, cost=8, bar=True)]
        ds = []
        if sg + 1 < NK:
            if abase(sg + 1) != abase(sg):
                dlt = (abase(sg + 1) - abase(sg)) & 0xffffffff
                ds += [I("valu", f"v_add_u32 v{WQA+s}, {hex(dlt)}, v{WQA+s}", 0) for s in range(4)]
                g0 = max(g0, 3)
            ds += [I("ds", t, g0 + (k * (25 - g0)) // 16) for k, t in enumerate(a_ld(sg + 1))]
        st["ds"] = ds
        vm = []
        for _ in range(2):
            if nx < NK and nx <= sg + AHEAD: vm += xn_ld(nx); nx += 1
        for _ in range(2 if sg < WR2 else 1):
            if nw < NK: vm += wq_items(nw); nw += 1
        if sg in kv_at: vm += kv_init(*kv_at[sg])
        st["vm"] = [dict(it, g=g0 + (k * (30 - g0)) // len(vm)) for k, it in enumerate(vm)]
        em.c(f"--- qproj k-step {sg}")
        run_mfmas(em, mf, st, ["bar", "ds", "vm"], bgs=[pub, tk])
        if CFG.get("qstamp"): stamp(em, 40 + sg, cyc=False)
    n = drain(em, pub) + drain(em, tk)
    if n: print("top8 level 1 leftover", n)
    e("s_nop 7\ns_nop 3")
    for qs in range(4):
        for s in range(4):
            for half in range(2):
                acc = QACC + ((2 * s + half) * 4 + qs) * 4
                e(f"v_pk_mul_f32 {vr(acc,2)}, {vr(acc,2)}, s[{S_C}:{S_C+1}]\nv_pk_mul_f32 {vr(acc+2,2)}, {vr(acc+2,2)}, s[{S_C}:{S_C+1}]")
            for half in range(2):
                acc = QACC + ((2 * s + half) * 4 + qs) * 4
                e(f"v_cvt_pk_bf16_f32 v{Qf(qs,s)+2*half}, v{acc}, v{acc+1}\nv_cvt_pk_bf16_f32 v{Qf(qs,s)+2*half+1}, v{acc+2}, v{acc+3}")
```

```python
WS_XNF = 0x0
WS_KEY = 0x240000
WS_CAND = 0x242000
WS_CY = 0x243000
WS_CYRED = 0x243080
WS_YB = 0x244000
WS_OFLAG = 0x248000
WS_PFLAG = 0x24A000
WS_EP = 0x24C000
WS_XA = 0x1800000
WS_OF = 0x400000
WS_YP = 0x2000000
WS_PROF = 0x3000000
WS_SIZE = 0x8000000
OOB = 0x7ffffff0
SRD_K, SRD_V, SRD_WQ, SRD_WS, SRD_DBG = 8, 12, 16, 20, 24
S_W4K = 30; S_W1K = 31; S_KOFF = 32; S_LOOP = 33; S_WQOFF = 34; S_HEAD = 35; S_G = 36; S_WAVE = 37
S_XCC = 38; S_VOFF = 39; S_C = 40; S_THR = 42; S_PASS = 43; S_OB = 44; S_PUB = 45; S_TCH = 46
S_MODE = 48; S_MX = 49; S_T = 50; S_T2 = 51
SRD_X, SRD_WO, SRD_OUT = 52, 56, 60
SRD_G, SRD_U, SRD_D = 64, 68, 72
S_KEY = 76
S_GOFF = 84; S_DOFF = 85; S_FB = 86
S_WOM = 87; S_WOS = 88; S_WOB = 89
S_M = 90
SRD_WR = 92
S_U = 92
S_EVT = 3
NGD = 144
YR0 = 144; NYR = 72
S_XB = 4
S_ROT = 5
S_KV0 = 7
```

```python
import re, struct
def f2u(f): return struct.unpack("<I", struct.pack("<f", f))[0]
def vr(a, n=1): return f"v{a}" if n == 1 else f"v[{a}:{a+n-1}]"
def ar(a, n=1): return f"a{a}" if n == 1 else f"a[{a}:{a+n-1}]"
def sr(a, n=1): return f"s{a}" if n == 1 else f"s[{a}:{a+n-1}]"
def regs_of(op):
    m = re.match(r"\s*([av])\[(\d+):(\d+)\]", op)
    if m: return [m.group(1) + str(r) for r in range(int(m.group(2)), int(m.group(3)) + 1)]
    m = re.match(r"\s*([av])(\d+)\s*$", op)
    if m: return [m.group(1) + m.group(2)]
    return []

class Em:
    def __init__(self):
        self.L = []
        self.vm = 0
        self.ds = 0
        self.ds_done = -1
        self.ldmap = {}
        self.tags = {}
        self.minN = 99
        self.gap = 0
        self.cold = []
    def e(self, s):
        for line in s.split("\n"):
            line = line.strip()
            if line: self.L.append(line)
    def c(self, s): self.L.append("; " + s)
    def label(self, name): self.L.append(name + ":")
    def vmem(self, s, tag=None):
        self.e(s); self.vm += 1
        if tag is not None: self.tags[tag] = self.vm - 1
        return self.vm - 1
    def dsop(self, s):
        self.e(s); self.ds += 1; return self.ds - 1
    def ds_load(self, s):
        idx = self.dsop(s)
        for r in regs_of(s.split(None, 1)[1].split(",")[0]): self.ldmap[r] = idx
        return idx
    def ds_all_done(self):
        self.e("s_waitcnt lgkmcnt(0)"); self.ds_done = self.ds - 1
    def need(self, regs, loose=8):
        idx = max([self.ldmap.get(r, -1) for r in regs] + [-1])
        if idx > self.ds_done:
            n = min(self.ds - 1 - idx, loose)
            self.minN = min(self.minN, self.ds - 1 - idx)
            self.e(f"s_waitcnt lgkmcnt({n})")
            self.ds_done = self.ds - 1 - n
    def mfma(self, s):
        ops = s.split(None, 1)[1].split(",")
        self.need(regs_of(ops[1]) + regs_of(ops[2]))
        self.e(s); self.gap += 1
    def vm_n(self, idx):
        n = self.vm - 1 - idx
        assert n >= 0
        return min(n, 63)
    def wait_vm(self, idx): self.e(f"s_waitcnt vmcnt({self.vm_n(idx)})")
    def wait_tag(self, *tags): self.wait_vm(max(self.tags[t] for t in tags))
    def text(self): return "\n".join(self.L) + "\n"

def srd(em, d, lo, hi, size):
    em.e(f"s_mov_b32 s{d}, s{lo}")
    em.e(f"s_and_b32 s{d+1}, s{hi}, 0xffff")
    em.e(f"s_mov_b32 s{d+2}, {size if isinstance(size, str) else hex(size)}")
    em.e(f"s_mov_b32 s{d+3}, 0x00020000")

def kernel_head(em, name):
    em.e(f".globl {name}\n.p2align 8\n.type {name},@function")
    em.label(name)

def kernel_desc(name, vgpr, sgpr, accum):
    return (f".amdhsa_kernel {name}\n  .amdhsa_next_free_vgpr {vgpr}\n  .amdhsa_next_free_sgpr {sgpr}\n  .amdhsa_accum_offset {accum}\n"
            f"  .amdhsa_group_segment_fixed_size 0\n  .amdhsa_kernarg_size 104\n  .amdhsa_user_sgpr_count 2\n"
            f"  .amdhsa_user_sgpr_kernarg_segment_ptr 1\n  .amdhsa_system_sgpr_workgroup_id_x 1\n  .amdhsa_float_denorm_mode_32 3\n.end_amdhsa_kernel\n")

KA_X, KA_K, KA_V, KA_WQ, KA_WO, KA_BX, KA_WR, KA_WG, KA_WU, KA_WD, KA_OUT, KA_DBG, KA_WS = [8 * i for i in range(13)]

KORDER = {"wait": -1, "ds": 0, "dsw": 0, "vmem": 0, "salu": 0, "cvt": 2, "valu": 2, "exp": 3, "xmf": 9}
VCOST = [4]
BGX = [0]
def I(k, t, g=0, **kw):
    d = dict(k=k, t=t, g=g); d.update(kw); return d
def icost(it):
    if "cost" in it: return it["cost"]
    if it["k"] == "xmf": return 0
    c = 0
    for line in it["t"].split("\n"):
        if line.endswith(":"): continue
        op = line.split()[0]
        if op in ("v_exp_f32", "v_rcp_f32", "v_sqrt_f32", "v_rsq_f32", "v_log_f32"): c += 8
        elif op.startswith("buffer_") or op.startswith("global_"): c += VCOST[0]
        else: c += 4
    if it.get("wait"): c += 4
    return c
class BG:
    def __init__(self, items=(), start=0):
        self.q = list(items); self.last = -1000; self.start = start
    def add(self, items): self.q += list(items)
def pack(n, streams, prio, budget=8, bgs=(), gap0=0, memfrom=0):
    out = [[] for _ in range(n + 1)]
    pos = {s: 0 for s in streams}
    bpos = [0] * len(bgs); blast = [b.last for b in bgs]
    for g in range(n + 1):
        used = 0
        b = budget if g < n else 10 ** 6
        progress = True
        while progress:
            progress = False
            for s in prio:
                if s not in streams or pos[s] >= len(streams[s]): continue
                it = streams[s][pos[s]]
                c = icost(it)
                if it["g"] > g or (used + c > b and not (used == 0 and c > b)): continue
                out[g].append(it); used += c; pos[s] += 1; progress = True
                break
            if progress or g == n: continue
            for k, bg in enumerate(bgs):
                if bpos[k] >= len(bg.q) or gap0 + g < bg.start: continue
                it = bg.q[bpos[k]]
                c = icost(it)
                d = max(it.get("d", 1), it.get("w", 0))
                if gap0 + g < blast[k] + d or gap0 + g < it.get("ag", 0): continue
                if it["k"] in ("ds", "dsw", "vmem") and g < memfrom: continue
                if used + c > b + BGX[0] and not (used == 0 and c > b): continue
                out[g].append(it); used += c; bpos[k] += 1; blast[k] = gap0 + g; progress = True
                break
    for s in streams: assert pos[s] == len(streams[s]), s
    def commit():
        for k, bg in enumerate(bgs):
            del bg.q[:bpos[k]]; bg.last = blast[k]
    return [sorted(g, key=lambda it: KORDER[it["k"]]) for g in out], commit
def emit_item(em, it, prev=None):
    if it.get("bar"):
        em.e(it["t"]() if callable(it["t"]) else it["t"]); em.ds_done = em.ds - 1
        return
    if it.get("needs"): em.need(it["needs"])
    if it.get("wait"): em.wait_tag(*it["wait"])
    if prev is not None and prev["k"] == "salu" and "m0" in prev["t"].split("\n")[-1] and it["k"] == "vmem" and "\n" not in it["t"]:
        em.e("s_nop 0")
    if it["k"] == "ds": em.ds_load(it["t"])
    elif it["k"] == "dsw": em.dsop(it["t"])
    elif it["k"] == "vmem": em.vmem(it["t"], it.get("tag"))
    elif it["k"] == "xmf": em.mfma(it["t"]); em.gap -= 1
    else: em.e(it["t"])
def emit_items(em, items):
    prev = None
    for it in items:
        emit_item(em, it, prev); prev = it
def emit_packed(em, mf, packed):
    for g in range(len(mf)):
        m = mf[g]
        if isinstance(m, tuple):
            em.wait_tag(*m[1]); m = m[0]
        em.mfma(m)
        emit_items(em, packed[g])
    emit_items(em, packed[len(mf)])
def drain(em, bg):
    prev = None
    for it in bg.q:
        w = it.get("w", 0)
        while w > 0:
            em.e(f"s_nop {min(w, 16) - 1}"); w -= 16
        emit_item(em, it, prev); prev = it
    n = len(bg.q); bg.q = []
    return n
def run_mfmas(em, mf, streams=None, prio=None, bgs=(), budget=8, memfrom=0):
    streams = streams or {}
    packed, commit = pack(len(mf), streams, prio or list(streams), budget, bgs, em.gap, memfrom)
    commit(); emit_packed(em, mf, packed)
```

```python
from lib import *
from layout import *
from core import MF, L16, TMP, CFG
from front import S4, WT, L2K, BFO, top8_items
GV = 240; TA = 241; TD = 242; WOV = 243; XR = 239; YV = 238; HXA = 237
F_G1, F_U1 = 0, 32768
F_G2, F_U2, F_D, F_XS, F_HX = 0, 4096, 8192, 45056, 54272
ACC = 132; BR = [124, 128, 248, 252]
def AFR(sg):
    if sg < 11: return ("a", 212 + 4 * sg)
    if sg < 13: return ("a", 136 + 4 * (sg - 11))
    return ("v", 104 + 4 * (sg - 13))
def R(f, off=0, n=4): return f"{f[0]}[{f[1]+off}:{f[1]+off+n-1}]"
RB = 64 * 9216

def setup(em):
    e = em.e
    t = TMP
    e(f"v_lshrrev_b32 v{GV}, 2, v1\nv_mul_u32_u24 v{GV}, 0x2400, v{GV}\nv_and_b32 v{t}, 3, v1\nv_lshl_add_u32 v{GV}, v{t}, 4, v{GV}")
    e(f"v_mul_u32_u24 v{WOV}, 3641, v1\nv_lshrrev_b32 v{WOV}, 16, v{WOV}\nv_mul_u32_u24 v{WOV}, {1152-288}, v{WOV}\nv_add_u32 v{WOV}, v{WOV}, v{L16}")
def addr_items():
    t = TMP
    return [I("valu", f"v_bfe_u32 v{t}, v1, 2, 2"), I("valu", f"v_lshl_add_u32 v{t}, v4, 2, v{t}", d=0),
            I("valu", f"v_and_b32 v{t+1}, 3, v1", d=0), I("valu", f"v_lshlrev_b32 v{t+1}, 3, v{t+1}", d=0),
            I("valu", f"v_lshl_add_u32 v{TA}, v{t}, 6, v{t+1}", d=0),
            I("salu", f"s_and_b32 s28, s{S_WAVE}, 1\ns_lshl_b32 s28, s28, 5"),
            I("salu", f"s_lshr_b32 s29, s{S_WAVE}, 1\ns_lshl_b32 s29, s29, 15"),
            I("salu", "s_add_u32 s28, s28, s29"), I("valu", f"v_add_u32 v{TA}, s28, v{TA}"),
            I("valu", f"v_mul_u32_u24 v{TD}, 0x480, v{t}", d=0), I("valu", f"v_add_u32 v{TD}, v{TD}, v{t+1}", d=0),
            I("salu", f"s_mul_i32 s28, s{S_WAVE}, 288\ns_add_u32 s28, s28, {F_D}"), I("valu", f"v_add_u32 v{TD}, s28, v{TD}")]
def gdma(srd_, lds, soff):
    return I("vmem", f"s_add_u32 m0, s{S_FB}, {lds}\ns_add_u32 s{S_T}, s{S_GOFF}, {soff}\nbuffer_load_dwordx4 v{GV}, {S4(srd_)}, s{S_T} offen lds")
def ddma(k):
    return I("vmem", f"s_add_u32 m0, s{S_FB}, {F_D + k*4096}\ns_add_u32 s{S_T}, s{S_DOFF}, {k*4096}\nbuffer_load_dwordx4 v{L16}, {S4(SRD_D)}, s{S_T} offen lds")
def xdma(k):
    return I("vmem", f"s_add_u32 m0, s{S_FB}, {F_XS + k*4096}\ns_lshl_b32 s{S_T}, s{S_W1K}, 1\ns_add_u32 s{S_T}, s{S_T}, {WS_XNF + k*8192}\nbuffer_load_dwordx4 v{L2K+4}, {S4(SRD_WS)}, s{S_T} offen {WT} lds")
def first_dma(u):
    r = []
    if u == 0: r.append(I("vmem", f"buffer_store_byte v{BFO+1}, v{BFO}, {S4(SRD_DBG)}, 0 offen {WT}"))
    if u < 4: r += [gdma(SRD_G, F_G1 + k * 4096, k * RB) for k in range(2 * u, 2 * u + 2)]
    elif u < 8: r += [gdma(SRD_U, F_U1 + k * 4096, k * RB) for k in range(2 * (u - 4), 2 * (u - 4) + 2)]
    if u == 12: r += [gdma(SRD_G, F_G2, 8 * RB), gdma(SRD_U, F_U2, 8 * RB), ddma(0)]
    if u == 13: r += [ddma(k) for k in range(1, 5)]
    if u == 14: r += [ddma(k) for k in range(5, 9)]
    if u == 15: r += [xdma(k) for k in range(3)]
    return r
def cand_items(em, gb):
    FL = L2K + 5
    fl_ld = f"buffer_load_dword v{FL}, v{L2K+1}, {S4(SRD_DBG)}, 0 offen {WT}"
    c_ld = f"s_mov_b32 s29, {hex(WS_CAND)}\nbuffer_load_dword v{L2K}, v{L2K+1}, {S4(SRD_WS)}, s29 offen {WT}"
    em.cold.append(f"SP_FL:\ns_sleep 2\n{fl_ld}\ns_waitcnt vmcnt(0)\nv_and_b32 v{L2K+2}, 0x20202020, v{FL}\nv_cmp_ne_u32 vcc, 0x20202020, v{L2K+2}\ns_cbranch_vccnz SP_FL\ns_branch SP_FL_RET")
    em.cold.append(f"SP_CAND:\ns_sleep 2\n{c_ld}\ns_waitcnt vmcnt(0)\nv_cmp_eq_u32 vcc, 0, v{L2K}\ns_cbranch_vccnz SP_CAND\ns_branch SP_CAND_RET")
    f0 = CFG.get("fl0", 250)
    return [I("valu", f"v_lshlrev_b32 v{L2K+1}, 2, v1"),
            I("vmem", fl_ld, tag="flags", ag=gb + f0),
            I("valu", f"v_and_b32 v{L2K+2}, 0x20202020, v{FL}", wait=["flags"], d=90),
            I("valu", f"v_cmp_ne_u32 vcc, 0x20202020, v{L2K+2}\ns_cbranch_vccnz SP_FL\nSP_FL_RET:"),
            I("vmem", c_ld, tag="cand"),
            I("valu", f"v_cmp_eq_u32 vcc, 0, v{L2K}\ns_cbranch_vccnz SP_CAND\nSP_CAND_RET:", wait=["cand"], d=90, cost=8)]
def level2_items():
    K, sel, t = L2K, L2K + 4, L2K + 1
    r = top8_items([K], K + 1, K + 2, K + 3, sel, to_sgpr=S_KEY)
    r += [I("valu", f"v_and_b32 v{sel}, 0xffff, v{sel}"), I("valu", f"v_sub_u32 v{sel}, 0xffff, v{sel}", d=0),
          I("valu", f"v_lshrrev_b32 v{t}, 4, v{sel}", d=0), I("valu", f"v_mul_u32_u24 v{t}, 0x4800, v{t}", d=0),
          I("valu", f"v_and_b32 v{sel}, 15, v{sel}", d=0), I("valu", f"v_lshl_add_u32 v{sel}, v{sel}, 4, v{t}", d=0),
          I("valu", f"v_lshrrev_b32 v{t}, 3, v1", d=0), I("valu", f"v_lshl_add_u32 v{sel}, v{t}, 8, v{sel}", d=0)]
    return r
def afrag_items(sgs):
    r = []
    for sg in sgs:
        off = sg * 2048 if sg < 16 else (sg - 16) * 2048
        for j in range(2): r.append(I("ds", f"ds_read_b64_tr_b16 {R(AFR(sg), 2*j, 2)}, v{TA} offset:{off + j*1024}", d=0))
    return r
def unpack(dlo, dhi, src, d=0):
    return [I("valu", f"v_lshlrev_b32 v{dlo}, 16, v{src}", d=d), I("valu", f"v_and_b32 v{dhi}, 0xffff0000, v{src}", d=0)]
def gu_items():
    t = TMP
    r = [I("salu", f"s_lshr_b32 s28, s{S_WAVE}, 1\ns_mul_i32 s28, s28, {F_U1 - F_U2}"), I("valu", f"v_subrev_u32 v{TA}, s28, v{TA}"),
         I("valu", f"v_and_b32 v{XR}, 7, v1", d=0), I("valu", f"v_lshl_add_u32 v{XR}, v4, 3, v{XR}", d=0), I("valu", f"v_lshlrev_b32 v{XR}, 4, v{XR}", d=0)]
    bl = lambda sg, d=0: I("ds", f"ds_read_b128 {vr(BR[sg & 3],4)}, v{XR} offset:{F_XS + sg*512}", d=d)
    r += [bl(0, 1)] + [bl(k) for k in range(1, 4)] + afrag_items([16, 17])
    for sg in range(18):
        r.append(I("xmf", f"{MF} {vr(ACC,4)}, {R(AFR(sg))}, {vr(BR[sg & 3],4)}, {'0' if sg == 0 else vr(ACC,4)}", d=(6 if sg == 0 else 2)))
        if sg + 4 < 18: r.append(bl(sg + 4, 1))
    U = 104
    r += [I("valu", f"v_cvt_pk_bf16_f32 v{U}, v{ACC}, v{ACC+1}", w=8), I("valu", f"v_cvt_pk_bf16_f32 v{U+1}, v{ACC+2}, v{ACC+3}", d=0)]
    r += unpack(ACC, ACC + 1, U) + unpack(ACC + 2, ACC + 3, U + 1)
    for k in range(4): r.append(I("valu", f"v_mul_f32 v{U+k}, 0xbfb8aa3b, v{ACC+k}", d=0))
    for k in range(4): r.append(I("valu", f"v_exp_f32 v{U+k}, v{U+k}", d=0))
    for k in range(4): r.append(I("valu", f"v_add_f32 v{U+k}, 1.0, v{U+k}", **({"w": 1} if k == 0 else {"d": 0})))
    for k in range(4): r.append(I("valu", f"v_rcp_f32 v{U+k}, v{U+k}", d=0))
    for k in range(4): r.append(I("valu", f"v_mul_f32 v{U+k}, v{ACC+k}, v{U+k}", **({"w": 1} if k == 0 else {"d": 0})))
    r += [I("valu", f"v_cvt_pk_bf16_f32 v{U+4}, v{U}, v{U+1}", d=0), I("valu", f"v_cvt_pk_bf16_f32 v{U+5}, v{U+2}, v{U+3}", d=0)]
    r += unpack(U, U + 1, U + 4) + unpack(U + 2, U + 3, U + 5)
    r.append(I("salu", f"s_cmp_lt_u32 s{S_WAVE}, 2\ns_cselect_b64 s[{S_M}:{S_M+1}], -1, 0"))
    for k in range(4): r.append(I("valu", f"v_cndmask_b32 v{ACC+k}, v{ACC+k}, v{U+k}, s[{S_M}:{S_M+1}]", d=(1 if k == 0 else 0)))
    r += [I("valu", f"v_add_u32 v{HXA}, s{S_W1K}, v{L16}", d=0), I("dsw", f"ds_write_b128 v{HXA}, {vr(ACC,4)} offset:{F_HX}")]
    return r
def dfrag_items():
    r = []
    for N in range(9):
        for j in range(2): r.append(I("ds", f"ds_read_b64_tr_b16 {ar(212+4*N+2*j,2)}, v{TD} offset:{j*16*1152 + N*32}", d=0))
    return r
def d_items():
    H = 104; HF = 120; t = TMP
    r = [I("ds", f"ds_read_b128 {vr(H+4*k,4)}, v{L16} offset:{F_HX + k*1024}", d=0) for k in range(4)]
    r += dfrag_items()
    r += [I("valu", f"v_lshl_add_u32 v{YV}, v4, 3, v3"), I("valu", f"v_lshlrev_b32 v{YV}, 4, v{YV}", d=0), I("valu", f"v_mov_b32 v{t}, {hex(OOB)}", d=0),
          I("valu", "v_cmp_lt_u32 vcc, 7, v3", d=0), I("valu", f"v_cndmask_b32 v{YV}, v{YV}, v{t}, vcc", w=2),
          I("salu", f"s_mul_i32 s28, s2, 18432\ns_mul_i32 s29, s{S_WAVE}, 4608"), I("salu", f"s_add_u32 s28, s28, s29\ns_add_u32 s28, s28, {hex(WS_YP)}")]
    for k in range(8): r.append(I("valu", f"v_mul_f32 v{H+k}, v{H+k}, v{H+8+k}", d=0, needs=[f"v{H+k}", f"v{H+8+k}"]))
    for k in range(4): r.append(I("valu", f"v_cvt_pk_bf16_f32 v{HF+k}, v{H+2*k}, v{H+2*k+1}", d=0))
    Y = lambda N: 248 if N == 0 else 212 + 4 * (N - 1)
    for N in range(9): r.append(I("xmf", f"{MF} {ar(Y(N),4)}, {ar(212+4*N,4)}, {vr(HF,4)}, 0", **({"w": 2} if N == 0 else {"d": 1})))
    for N in range(9):
        pre = "s_add_u32 s28, s28, 4096\n" if N == 8 else ""
        r.append(I("vmem", f"{pre}buffer_store_dwordx4 {ar(Y(N),4)}, v{YV}, {S4(SRD_WS)}, s28 offen offset:{(N*512) % 4096} {WT}", **({"w": 8} if N == 0 else {"d": 2})))
    return r

def events(em, ret, code_pf):
    e = em.e
    t = TMP
    YL = lambda i: 104 + 4 * i if i < 8 else 248
    em.label("K_EVT")
    e(f"s_sub_u32 s{S_EVT}, s{S_LOOP}, 1")
    e(f"s_cmp_eq_u32 s{S_LOOP}, {CFG.get('tchat', 2)}\ns_cselect_b32 s{S_TCH}, s{S_OB}, s{S_TCH}")
    e(f"s_cmp_eq_u32 s{S_LOOP}, 1\ns_cbranch_scc0 EV_N1")
    code_pf(em)
    em.label("EV_N1")
    e(f"s_cmp_eq_u32 s{S_PASS}, 0\ns_cbranch_scc0 {ret}")
    e(f"s_cmp_lt_u32 s2, {NGD}\ns_cbranch_scc0 EV_Y")
    e(f"s_cmp_eq_u32 s{S_LOOP}, 5\ns_cbranch_scc0 {ret}\ns_mov_b32 s{S_EVT}, {CFG.get('tchat', 2)}\ns_cmp_eq_u32 s{S_WAVE}, 0\ns_cbranch_scc0 {ret}")
    e(f"v_mov_b32 v{t}, 0\nv_mov_b32 v{t+1}, 1\ns_mov_b32 s28, {hex(WS_CY)}\ns_mov_b64 exec, 1")
    e(f"buffer_atomic_add v{t+1}, v{t}, {S4(SRD_WS)}, s28 offen sc1")
    e(f"s_mov_b64 exec, -1\ns_branch {ret}")
    em.label("EV_Y")
    e(f"s_cmp_lt_u32 s2, {YR0 + NYR}\ns_cbranch_scc0 {ret}")
    e(f"s_cmp_eq_u32 s{S_LOOP}, 4\ns_cbranch_scc0 EV_Y4")
    e(f"v_mov_b32 v{t}, 0\ns_mov_b32 s28, {hex(WS_CY)}\nbuffer_load_dword v{t+1}, v{t}, {S4(SRD_WS)}, s28 offen {WT}\ns_branch {ret}")
    em.label("EV_Y4")
    e(f"s_sub_u32 s29, s2, {YR0}\ns_lshl_b32 s29, s29, 2\ns_add_u32 s29, s29, s{S_WAVE}")
    e(f"s_cmp_eq_u32 s{S_LOOP}, 3\ns_cbranch_scc0 EV_Y3")
    e(f"v_readfirstlane_b32 s28, v{t+1}\ns_cmp_ge_u32 s28, {NGD}\ns_cbranch_scc1 EV_Y4OK")
    em.label("EV_Y4SP")
    e(f"s_sleep 8\ns_mov_b32 s28, {hex(WS_CY)}\nbuffer_load_dword v{t+1}, v{t}, {S4(SRD_WS)}, s28 offen {WT}\ns_waitcnt vmcnt(0)")
    e(f"v_readfirstlane_b32 s28, v{t+1}\ns_cmp_ge_u32 s28, {NGD}\ns_cbranch_scc0 EV_Y4SP")
    em.label("EV_Y4OK")
    e(f"v_lshrrev_b32 v{t}, 2, v1\nv_mul_u32_u24 v{t}, 18432, v{t}\nv_and_b32 v{t+1}, 3, v1\nv_lshl_add_u32 v{t}, v{t+1}, 4, v{t}")
    e(f"s_lshl_b32 s28, s29, 6\ns_add_u32 s28, s28, {hex(WS_YP)}")
    for i in range(9):
        e(f"buffer_load_dwordx4 {vr(YL(i),4)}, v{t}, {S4(SRD_WS)}, s28 offen {WT}")
        if i < 8: e(f"s_add_u32 s28, s28, {16*18432}")
    e(f"s_branch {ret}")
    em.label("EV_Y3")
    e(f"s_cmp_eq_u32 s{S_LOOP}, 2\ns_cbranch_scc0 EV_Y2")
    Y = 104
    for a, b in ((0, 1), (2, 3), (4, 5), (6, 7), (0, 2), (4, 6), (0, 8), (0, 4)):
        for r in (0, 2): e(f"v_pk_add_f32 {vr(YL(a)+r,2)}, {vr(YL(a)+r,2)}, {vr(YL(b)+r,2)}")
    T4 = 108
    e("s_nop 1")
    for r in range(4): e(f"v_add_f32_dpp v{T4+r}, v{Y+r}, v{Y+r} row_ror:4 row_mask:0xf bank_mask:0xf")
    for r in range(4): e(f"v_add_f32_dpp v{Y+r}, v{T4+r}, v{T4+r} row_ror:8 row_mask:0xf bank_mask:0xf")
    for sw in ("v_permlane16_swap_b32", "v_permlane32_swap_b32"):
        for r in range(4): e(f"v_mov_b32 v{T4+r}, v{Y+r}")
        for r in range(4): e(f"{sw} v{Y+r}, v{T4+r}")
        for r in range(4): e(f"v_add_f32 v{Y+r}, v{Y+r}, v{T4+r}")
    K = 112
    e(f"s_and_b32 s28, s29, 1\ns_lshl_b32 s28, s28, 2\nv_and_b32 v{K+1}, 3, v1\nv_add_u32 v{K+1}, s28, v{K+1}\nv_mov_b32 v{K}, s{S_KEY}")
    for k in range(1, 8):
        e(f"v_cmp_eq_u32 vcc, {k}, v{K+1}\nv_mov_b32 v{K+2}, s{S_KEY+k}\ns_nop 0\nv_cndmask_b32 v{K}, v{K}, v{K+2}, vcc")
    e(f"v_ashrrev_i32 v{K+2}, 31, v{K}\nv_not_b32 v{K+2}, v{K+2}\nv_or_b32 v{K+2}, 0x80000000, v{K+2}\nv_xor_b32 v{K}, v{K}, v{K+2}\nv_and_b32 v{K}, 0xffff0000, v{K}")
    e(f"v_mul_f32 v{K}, 0xbfb8aa3b, v{K}\nv_exp_f32 v{K}, v{K}\ns_nop 0\nv_add_f32 v{K}, 1.0, v{K}\nv_rcp_f32 v{K}, v{K}\ns_nop 0")
    e(f"v_cvt_pk_bf16_f32 v{K}, v{K}, v{K}\nv_lshlrev_b32 v{K}, 16, v{K}")
    e(f"v_cvt_pk_bf16_f32 v{T4}, v{Y}, v{Y+1}\nv_cvt_pk_bf16_f32 v{T4+1}, v{Y+2}, v{Y+3}")
    e(f"v_lshlrev_b32 v{Y}, 16, v{T4}\nv_and_b32 v{Y+1}, 0xffff0000, v{T4}\nv_lshlrev_b32 v{Y+2}, 16, v{T4+1}\nv_and_b32 v{Y+3}, 0xffff0000, v{T4+1}")
    for r in range(4): e(f"v_mul_f32 v{Y+r}, v{Y+r}, v{K}")
    e(f"v_cvt_pk_bf16_f32 v{T4}, v{Y}, v{Y+1}\nv_cvt_pk_bf16_f32 v{T4+1}, v{Y+2}, v{Y+3}")
    e(f"v_mul_u32_u24 v{K+1}, 0x480, v{K+1}\ns_lshr_b32 s28, s29, 1\ns_lshl_b32 s28, s28, 3\ns_add_u32 s28, s28, {hex(WS_YB)}\ns_mov_b64 exec, 15")
    e(f"buffer_store_dwordx2 {vr(T4,2)}, v{K+1}, {S4(SRD_WS)}, s28 offen {WT}")
    e(f"s_mov_b64 exec, -1\ns_branch {ret}")
    em.label("EV_Y2")
    e(f"v_mov_b32 v{t}, 0\nv_mov_b32 v{t+1}, 1\ns_mov_b32 s28, {hex(WS_CYRED)}\ns_mov_b64 exec, 1")
    e(f"buffer_atomic_add v{t+1}, v{t}, {S4(SRD_WS)}, s28 offen sc1")
    e(f"s_mov_b64 exec, -1\ns_branch {ret}")
```

```python
from lib import *
from layout import *
import core
from core import MF, L16, TMP, CFG, AL, Oacc, pv, sums, VSLOT
from front import S4, WT
from moe import WOV, unpack

OWN = 8; ACC = 72; AFR = 64; ARING = 8
BUNITS = list(range(128, 212, 4)) + list(range(244, 256, 4)) + list(range(96, 128, 4)) + list(range(0, 64, 4))
def BR(i, k): return BUNITS[(i - 1) * 16 + k]
XA_, XNA_, YA_ = 212, 222, 232
PAT = 234
BASE = {0: 237, 1: 216, 2: 219, 3: 222}
ZV = 254; L8 = 226; XV = 248; XV8 = 249; FV = 229; FLG = 230; ONE = 231; TWO = 246; YO = 250; YO8 = 251; XNA = 252; XNA8 = 253; ROW = 132
GF = 38; T0 = 58; XF = 18; A8 = 66
LSUM = 120
S_RS = 64
S_R8 = [72, 73, 74, 75, 84, 85, 86, 87]
S_OFL, S_PFL, S_KQ, S_NB, S_B, S_SX, S_BB = 94, 95, 32, 33, 34, 39, 49
T256 = 241; TDUM = 242; L16B = 243
FLAG_LDS = VSLOT[1] + 512
LD = WT

def wo_piece(p0, masked=False):
    NT = CFG.get("wont", "")
    t = f"s_add_u32 m0, s{S_WOS}, {864*p0}\n"
    if masked: t += f"s_min_u32 m0, m0, {864*170}\n"
    t += f"s_lshl2_add_u32 s{S_T}, m0, s{S_WOB}\n"
    if masked: t += f"s_cmp_ge_u32 s{S_WAVE}, 2\ns_cselect_b32 exec_hi, 15, -1\n"
    t += f"buffer_load_dwordx4 v{WOV}, {S4(SRD_WO)}, s{S_T} offen {NT} lds"
    if masked: t += "\ns_mov_b32 exec_hi, -1"
    return I("vmem", t)
def wo_loop_items():
    NT = CFG.get("wont", "")
    return [I("vmem", f"s_mov_b32 m0, s{S_WOM}\ns_lshl2_add_u32 s{S_T}, s{S_WOM}, s{S_WOB}\nbuffer_load_dwordx4 v{WOV}, {S4(SRD_WO)}, s{S_T} offen {NT} lds"),
            I("salu", f"s_add_u32 s{S_WOM}, s{S_WOM}, 3456\ns_min_u32 s{S_WOM}, s{S_WOM}, {74*864}")]
def touch(imm):
    return I("vmem", f"buffer_load_dword v{TDUM}, v{T256}, {S4(SRD_WS)}, s{S_TCH} offen offset:{imm} sc1")
def last_dma(u):
    rng = {58: range(72, 84, 4), 59: range(84, 92, 4), 60: range(92, 112, 4), 61: range(112, 132, 4), 62: range(132, 160, 4), 63: range(160, 172, 4)}
    r = [wo_piece(p, masked=(p == 168)) for p in rng.get(u, ())]
    LT = [int(x) for x in str(CFG.get("ltch", "")).split("+") if x != ""]
    if u - 58 < len(LT): r = [touch(LT[u - 58])] + r
    return r
def flag_touch_items():
    t = TMP
    return [I("valu", f"v_and_b32 v{t}, 15, v1"), I("valu", f"v_lshrrev_b32 v{t+1}, 3, v{t}", d=0), I("valu", f"v_and_b32 v{t}, 7, v{t}", d=0),
            I("valu", f"v_lshlrev_b32 v{t}, 6, v{t}", d=0), I("valu", f"v_lshl_add_u32 v{t}, v{t+1}, 13, v{t}", d=0),
            I("salu", f"s_lshl_b32 s28, s{S_G}, 9\ns_add_u32 s28, s28, {hex(WS_OFLAG)}"),
            I("vmem", f"buffer_load_dword v{TDUM}, v{t}, {S4(SRD_WS)}, s28 offen sc1")]
def pattern_items():
    t = TMP
    r = [I("valu", f"v_bfe_u32 v{t}, v1, 2, 2"), I("valu", f"v_lshl_add_u32 v{t}, v4, 2, v{t}", d=0), I("valu", f"v_mul_u32_u24 v{t}, 288, v{t}", d=0),
         I("valu", f"v_and_b32 v{t+1}, 3, v1", d=0), I("valu", f"v_lshl_add_u32 v{PAT+2}, v{t+1}, 3, v{t}", d=0), I("valu", f"v_add_u32 v{PAT+2}, 256, v{PAT+2}", d=0),
         I("valu", f"v_lshl_add_u32 v{t}, v{t+1}, 4, v{t}", d=0),
         I("salu", f"s_lshr_b32 s28, s{S_HEAD}, 4\ns_lshl_b32 s28, s28, 6"), I("valu", f"v_add_u32 v{PAT}, s28, v{t}"),
         I("salu", "s_xor_b32 s28, s28, 64"), I("valu", f"v_add_u32 v{PAT+1}, s28, v{t}")]
    return r + base_items(0)
def base_items(i):
    return [I("salu", f"s_add_u32 s28, s{S_HEAD}, {i}\ns_and_b32 s28, s28, 3"), I("salu", "s_mul_i32 s28, s28, 36864")] + \
           [I("valu", f"v_add_u32 v{BASE[i]+k}, s28, v{PAT+k}", d=(1 if k == 0 else 0)) for k in range(3)]

def gate_load_items(em):
    gq = BG()
    def gs(t, **kw): gq.add([I("salu", x, **(kw if k == 0 else {"d": 0})) for k, x in enumerate(t.split("\n"))])
    def gv(t, **kw): gq.add([I("valu", x, **(kw if k == 0 else {"d": 0})) for k, x in enumerate(t.split("\n"))])
    U0, U1, T0 = 92, 93, 133
    gv(f"v_mov_b32 v{ZV}, {hex(OOB)}")
    gs(f"s_lshl2_add_u32 s{U0}, s{S_G}, s{S_WAVE}\ns_bfe_u32 s{U1}, s{S_HEAD}, 0x20002")
    gs(f"s_lshl2_add_u32 s{U0}, s{U0}, s{U1}\ns_lshl_b32 s{U1}, s{U0}, 4")
    gv(f"v_add_u32 v{ROW}, s{U1}, v3\nv_writelane_b32 v{ZV}, 0, 0")
    gs(f"s_mul_i32 s{U0}, s{U0}, 18432\ns_and_b32 s{U1}, s{S_HEAD}, 3\ns_mul_i32 s{U1}, s{U1}, 144")
    gv(f"v_lshlrev_b32 v{YO8}, 2, v4\nv_add_u32 v{YO8}, s{U1}, v{YO8}\nv_add_u32 v{YO8}, 128, v{YO8}\nv_lshlrev_b32 v{YO}, 3, v4")
    gs(f"s_lshr_b32 s{S_M}, s{S_HEAD}, 4\ns_lshl_b32 s{S_M}, s{S_M}, 5\ns_add_u32 s{U1}, s{U1}, s{S_M}")
    gv(f"v_add_u32 v{YO}, s{U1}, v{YO}")
    for c, a in ((YO, XNA), (YO8, XNA8)):
        gv(f"v_lshrrev_b32 v{T0}, 5, v{c}\nv_bfe_u32 v{T0+1}, v{c}, 2, 2\nv_lshl_add_u32 v{T0+1}, v{T0+1}, 4, v3\nv_lshlrev_b32 v{T0+1}, 4, v{T0+1}", d=0)
        gv(f"v_lshl_add_u32 v{a}, v{T0}, 10, v{T0+1}\nv_bfe_u32 v{T0}, v{c}, 4, 1\nv_lshl_add_u32 v{a}, v{T0}, 3, v{a}\nv_lshlrev_b32 v{c}, 1, v{c}", d=0)
    gv(f"v_mul_u32_u24 v{T0}, 0x480, v{ROW}\nv_add_u32 v{XV}, v{T0}, v{YO}\nv_add_u32 v{XV8}, v{T0}, v{YO8}\nv_mov_b32 v{T0+2}, {hex(OOB - 0x4000)}", d=0)
    assert WS_XNF == 0
    gq.add([I("vmem", f"s_mov_b32 s{U1}, {hex(WS_CYRED)}\nbuffer_load_dword v{TWO}, v{ZV}, {S4(SRD_WS)}, s{U1} offen {LD}", tag="yc")])
    for p in range(2):
        for h in range(2): gq.add([I("vmem", f"buffer_load_dwordx2 {ar(XNA_+4*p+2*h,2)}, v{XNA}, {S4(SRD_WS)}, s{U0} offen offset:{2048*p + 256*h} {LD}", d=3)])
    gq.add([I("vmem", f"buffer_load_dwordx2 {ar(XNA_+8,2)}, v{XNA8}, {S4(SRD_WS)}, s{U0} offen {LD}", d=3)])
    for p in range(2): gq.add([I("vmem", f"buffer_load_dwordx4 {ar(XA_+4*p,4)}, v{XV}, {S4(SRD_X)}, 0 offen offset:{128*p}", d=3)])
    gq.add([I("vmem", f"buffer_load_dwordx2 {ar(XA_+8,2)}, v{XV8}, {S4(SRD_X)}, 0 offen", d=3)])
    gv(f"v_sub_u32 v{T0}, 0xffff, v{ROW}")
    M2 = f"s[{S_M}:{S_M+1}]"
    for k in range(8):
        gs(f"s_and_b32 s{U1}, s{S_KEY+k}, 0xffff")
        gv(f"v_cmp_eq_u32 {M2}, s{U1}, v{T0}\nv_mov_b32 v{T0+1}, {k*1152}")
        gv(f"v_cndmask_b32 v{T0+2}, v{T0+2}, v{T0+1}, {M2}", w=1)
    gv(f"v_add_u32 v{YO}, v{YO}, v{T0+2}\nv_add_u32 v{YO8}, v{YO8}, v{T0+2}\nv_lshrrev_b32 v{T0+1}, 14, v{T0+2}\nv_cmp_eq_u32 {M2}, 0, v{T0+1}", d=0)
    gv(f"v_readfirstlane_b32 s{U1}, v{TWO}", wait=["yc"])
    gq.add([I("salu", f"s_cmp_eq_u64 {M2}, 0\ns_cselect_b32 s{U1}, {4*NYR}, s{U1}", d=2),
            I("salu", f"s_cmp_lt_u32 s{U1}, {4*NYR}\ns_cbranch_scc1 SP_Y\nSP_Y_RET:")])
    em.cold.append(f"SP_Y:\ns_sleep 4\ns_mov_b32 s{U1}, {hex(WS_CYRED)}\nbuffer_load_dword v{TWO}, v{ZV}, {S4(SRD_WS)}, s{U1} offen {LD}\ns_waitcnt vmcnt(0)\n"
                   f"v_readfirstlane_b32 s{U1}, v{TWO}\ns_cmp_lt_u32 s{U1}, {4*NYR}\ns_cbranch_scc1 SP_Y\ns_branch SP_Y_RET")
    gs(f"s_mov_b32 s{U1}, {hex(WS_YB)}")
    for p in range(2): gq.add([I("vmem", f"buffer_load_dwordx4 {ar(YA_+4*p,4)}, v{YO}, {S4(SRD_WS)}, s{U1} offen offset:{128*p} {LD}")])
    gq.add([I("vmem", f"buffer_load_dwordx2 {ar(YA_+8,2)}, v{YO8}, {S4(SRD_WS)}, s{U1} offen {LD}")])
    return gq.q

def acc_of(n, qs):
    return ACC + 128 + qs * 4 if n == 8 else ACC + ((n >> 1) * 4 + qs) * 8 + (n & 1) * 4
def bfrag(t, qs):
    i, s = t >> 2, t & 3
    return vr(OWN + (qs * 4 + s) * 4, 4) if i == 0 else ar(BR(i, qs * 4 + s), 4)
def a_rd(slot, t, n):
    i, s = t >> 2, t & 3
    if n == 8: b, imm = BASE[i] + 2, 0
    else: b, imm = BASE[i] + ((n >> 1) & 1), 128 * (n >> 2) + 8 * (n & 1)
    return [f"ds_read_b64_tr_b16 {ar(AFR+slot*4+2*j,2)}, v{b} offset:{s*9216 + j*4608 + imm}" for j in range(2)]

def epilogue(em, ST, sfx):
    e = em.e
    e("s_waitcnt lgkmcnt(0)\ns_barrier"); em.ds_done = em.ds - 1
    sm = sums(63)
    def mf(qs):
        r = []
        if CFG["sum"] == "h":
            if qs == 0: r += sm
        else: r.append(sm[qs])
        return r + [pv(63, T, qs) for T in range(8)]
    R = LSUM + 4
    def epi(qs):
        r = []
        if CFG["sum"] == "h":
            a = AL + (qs >> 1) * 4 + (qs & 1) * 2
            r += [f"v_accvgpr_read_b32 v{LSUM+qs}, a{a}", f"v_accvgpr_read_b32 v{R+2*qs}, a{a+1}", f"v_add_f32 v{LSUM+qs}, v{LSUM+qs}, v{R+2*qs}"]
        else: r += [f"v_accvgpr_read_b32 v{LSUM+qs}, a{AL+qs*4}"]
        r += [f"v_rcp_f32 v{R+2*qs}, v{LSUM+qs}", f"s_add_u32 s{S_T}, s{S_OB}, {qs*4096}", f"v_mov_b32 v{R+2*qs+1}, v{R+2*qs}"]
        for s in range(4):
            t = 104 + (s & 1) * 8
            o = OWN + (qs * 4 + s) * 4
            for half in range(2):
                for rr in range(4): r.append(f"v_accvgpr_read_b32 v{t+half*4+rr}, a{Oacc(2*s+half, qs)+rr}")
            for k in range(4): r.append(f"v_pk_mul_f32 {vr(t+2*k,2)}, {vr(t+2*k,2)}, {vr(R+2*qs,2)}")
            for k in range(4): r.append(f"v_cvt_pk_bf16_f32 v{o+k}, v{t+2*k}, v{t+2*k+1}")
            r.append(f"buffer_store_dwordx4 {vr(o,4)}, v{L16}, {S4(SRD_WS)}, s{S_T} offen offset:{s*1024} {ST}")
        return r
    for m in mf(0): em.mfma(m)
    for qs in range(4):
        nxt = mf(qs + 1) if qs < 3 else []
        for m in nxt: em.mfma(m)
        if len(nxt) < 8: e("s_nop 7")
        for t in epi(qs): e(t)
    T2 = 104
    e(f"v_max3_f32 v{T2}, v{LSUM}, v{LSUM+1}, v{LSUM+2}\nv_max_f32 v{T2}, v{T2}, v{LSUM+3}")
    e(f"v_add_f32 v{T2+1}, v{LSUM}, v{LSUM+1}\nv_add_f32 v{T2+1}, v{T2+1}, v{LSUM+2}\nv_add_f32 v{T2+1}, v{T2+1}, v{LSUM+3}")
    e(f"v_cmp_nge_f32 vcc, s{S_THR}, v{T2}\nv_cmp_u_f32 s[28:29], v{T2+1}, v{T2+1}\ns_or_b64 vcc, vcc, s[28:29]")
    e("s_cmp_lg_u64 vcc, 0\ns_cselect_b32 s28, 1, 0")
    e(f"v_mov_b32 v{T2}, s28\ns_lshl_b32 s29, s{S_WAVE}, 2\ns_add_u32 s29, s29, {FLAG_LDS}\nv_mov_b32 v{T2+1}, s29\nv_mov_b32 v{T2+2}, {FLAG_LDS}")
    e(f"ds_write_b32 v{T2+1}, v{T2}\ns_waitcnt vmcnt(16) lgkmcnt(0)\ns_barrier")
    e(f"ds_read_b128 {vr(T2+4,4)}, v{T2+2}")
    em.ds = 1; em.ds_done = -1; em.ldmap = {}
    em.vm = 16; em.tags = {"ost": 15}

def check(em):
    T2 = 104
    e = em.e
    e(f"s_waitcnt lgkmcnt({em.ds - 1})")
    e(f"v_or_b32 v{T2+4}, v{T2+4}, v{T2+5}\nv_or3_b32 v{T2+4}, v{T2+4}, v{T2+6}, v{T2+7}\ns_nop 0")
    e(f"v_readfirstlane_b32 s28, v{T2+4}\ns_cmp_gt_u32 s28, s{S_PASS}\ns_cbranch_scc1 K_FALLBACK")

def main(em, ST, sfx, stamp):
    e = em.e
    DL = WT if ST else CFG.get("dl", WT).replace("pl", "")
    FLD = WT if ST else CFG.get("fld", WT)
    KO = CFG.get("ko", 8)
    seq = [(t, n) for t in range(KO) for n in range(9)]
    stages = [[8], [0, 1], [2, 3], [4, 5], [6, 7]]
    for st in stages:
        for n in st: seq += [(t, n) for t in range(KO, 16)]
    PD = 7
    for k in range(PD):
        for x in a_rd(k, *seq[k]): em.ds_load(x)
    check(em)
    g0 = em.gap
    G = lambda f: g0 + 4 * f
    sc = BG()
    def sal(t, **kw): sc.add([I("salu", t, **kw)])
    def val(t, **kw): sc.add([I("valu", t, **kw)])
    sal(f"s_lshr_b32 s{S_KQ}, s{S_HEAD}, 2\ns_and_b32 s{S_NB}, s{S_HEAD}, 3")
    sal(f"s_lshl_b32 s{S_OFL}, s{S_G}, 9\ns_lshl_b32 s28, s{S_KQ}, 6")
    sal(f"s_lshr_b32 s{S_B}, s{S_KQ}, 2")
    sal(f"s_add_u32 s{S_OFL}, s{S_OFL}, s28\ns_lshl_b32 s28, s{S_WAVE}, 4")
    sal(f"s_add_u32 s{S_OFL}, s{S_OFL}, s28\ns_add_u32 s{S_OFL}, s{S_OFL}, {hex(WS_OFLAG)}")
    val(f"v_mov_b32 v{ONE}, 1\nv_and_b32 v{FV}, 7, v1")
    val(f"v_lshlrev_b32 v{FV}, 2, v{FV}\nv_lshlrev_b32 v{L8}, 3, v1")
    sal(f"s_lshl2_add_u32 s29, s{S_NB}, s{S_OFL}")
    sc.add([I("vmem", f"buffer_store_dword v{ONE}, v{ZV}, {S4(SRD_WS)}, s29 offen {ST}", wait=["ost"], ag=g0 + CFG.get("of0", 20))])
    sc.add(base_items(1))
    def oflag_load(tag, ag): sc.add([I("vmem", f"buffer_load_dword v{FLG}, v{FV}, {S4(SRD_WS)}, s{S_OFL} offen {FLD}", tag=tag, ag=ag)])
    def spin(lab, off, cmp_, tst):
        em.cold.append(f"{lab}:\ns_sleep 1\nbuffer_load_dword v{FLG}, v{FV}, {S4(SRD_WS)}, s{off} offen {FLD}\ns_waitcnt vmcnt(0)\n{cmp_}\n{tst}\ns_cbranch_scc1 {lab}\ns_branch {lab}_RET")
    def flag_check(q, lab, off, tag, cmp_, tst, ag):
        q.add([I("valu", cmp_, wait=[tag], ag=ag), I("salu", f"{tst}\ns_cbranch_scc1 {lab}\n{lab}_RET:", d=2)])
        spin(lab, off, cmp_, tst)
    def b_prep(i):
        sal(f"s_add_u32 s28, s{S_NB}, {i}\ns_and_b32 s28, s28, 3")
        sal(f"s_sub_u32 s28, s28, s{S_NB}\ns_lshl_b32 s28, s28, 16")
        sal(f"s_add_u32 s{S_RS}, s28, s{S_OB}\ns_add_u32 s{S_RS+1}, s{S_RS}, 4096")
        sal(f"s_add_u32 s{S_RS+2}, s{S_RS}, 8192\ns_add_u32 s{S_RS+3}, s{S_RS}, 12288")
    def b_loads(i):
        for s in range(4):
            for qs in range(4):
                sc.add([I("vmem", f"buffer_load_dwordx4 {ar(BR(i, qs*4+s),4)}, v{L16}, {S4(SRD_WS)}, s{S_RS+qs} offen offset:{s*1024} {DL}", tag=("b", i, s), d=(1 if s + qs == 0 else CFG.get("bd", 4)))])
                if i == 1 and s == 2 and qs == 0: oflag_load("of2", 0)
    oflag_load("of1", g0 + CFG.get("of1", 40))
    sal(f"s_add_u32 s{S_SX}, s{S_HEAD}, 1\ns_and_b32 s{S_SX}, s{S_SX}, 3")
    b_prep(1)
    sc.add(base_items(2) + base_items(3))
    flag_check(sc, f"SP_O1{sfx}", S_OFL, "of1", f"v_cmp_gt_u32 vcc, 1, v{FLG}", f"s_bitcmp1_b32 vcc_lo, s{S_SX}", g0 + CFG.get("of1", 40) + 22)
    b_loads(1)
    b_prep(2)
    flag_check(sc, f"SP_O2{sfx}", S_OFL, "of2", f"v_cmp_gt_u32 vcc, 1, v{FLG}", "s_and_b32 s29, vcc_lo, 15", 0)
    b_loads(2); b_prep(3); b_loads(3)
    sal(f"s_lshl2_add_u32 s28, s{S_G}, s{S_NB}\ns_lshl2_add_u32 s28, s28, s{S_WAVE}")
    sal(f"s_lshl_b32 s{S_PFL}, s28, 5\ns_add_u32 s{S_PFL}, s{S_PFL}, {hex(WS_PFLAG)}")
    sal(f"s_lshl_b32 s28, s{S_KQ}, 18\ns_sub_u32 s{S_BB}, s{S_OB}, s28")
    val(f"v_add_u32 v{L16B}, 0x2000, v{L16}\nv_mov_b32 v{TWO}, 2")
    sal(f"s_lshl2_add_u32 s29, s{S_NB}, s{S_OFL}")
    sc.add([I("vmem", f"buffer_store_dword v{TWO}, v{ZV}, {S4(SRD_WS)}, s29 offen {ST}", wait=[("b", 3, 3)], d=CFG.get("cf0", 24))])
    for i in range(8):
        sal(f"s_add_u32 s28, s{S_KQ}, {i}\ns_and_b32 s28, s28, 7")
        sal(f"s_xor_b32 s29, s28, s{S_KQ}\ns_lshl_b32 s28, s28, 18")
        sal(f"s_add_u32 s28, s28, s{S_BB}\ns_and_b32 s29, s29, 4")
        q_ = (-i) & 3
        sal(f"s_add_u32 s{S_R8[i]}, s28, {(q_ >> 1) * 8192}\ns_lshl_b32 s29, s29, 10")
        if i: sal(f"s_add_u32 s{S_RS+i}, s28, s29")
        if i == 3: oflag_load("of3", 0)
    flag_check(sc, f"SP_O3{sfx}", S_OFL, "of3", f"v_cmp_gt_u32 vcc, 2, v{FLG}", "s_and_b32 s29, vcc_lo, 15", 0)
    gq = BG(start=G(36) + 2)
    def gs(t, **kw): gq.add([I("salu", t, **kw)])
    def gv(t, **kw): gq.add([I("valu", t, **kw)])
    for k in range(10):
        a, b, c, d_ = GF + 2 * k, GF + 2 * k + 1, T0, T0 + 1
        gv(f"v_accvgpr_read_b32 v{b}, a{XNA_+k}", d=0); gv(f"v_accvgpr_read_b32 v{d_}, a{YA_+k}", d=0)
        gq.add(unpack(a, b, b) + unpack(c, d_, d_))
        gv(f"v_add_f32 v{a}, v{a}, v{c}", d=0); gv(f"v_add_f32 v{b}, v{b}, v{d_}", d=0)
        gv(f"v_cvt_pk_bf16_f32 v{c}, v{a}, v{b}", d=0)
        gq.add(unpack(a, b, c))
        gv(f"v_mul_f32 v{c}, 0xbfb8aa3b, v{a}", d=0); gv(f"v_mul_f32 v{d_}, 0xbfb8aa3b, v{b}", d=0)
        gv(f"v_exp_f32 v{c}, v{c}", d=0); gv(f"v_exp_f32 v{d_}, v{d_}", d=0)
        gv(f"v_add_f32 v{c}, 1.0, v{c}", w=1); gv(f"v_add_f32 v{d_}, 1.0, v{d_}", d=0)
        gv(f"v_rcp_f32 v{c}, v{c}", d=0); gv(f"v_rcp_f32 v{d_}, v{d_}", d=0)
        gv(f"v_mul_f32 v{a}, v{a}, v{c}", w=1); gv(f"v_mul_f32 v{b}, v{b}, v{d_}", d=0)
        gv(f"v_cvt_pk_bf16_f32 v{c}, v{a}, v{b}", d=0)
        gq.add(unpack(a, b, c))
    for k in range(10):
        gv(f"v_accvgpr_read_b32 v{XF+2*k+1}, a{XA_+k}", d=0)
        gq.add(unpack(XF + 2 * k, XF + 2 * k + 1, XF + 2 * k + 1))
    gs(f"s_mov_b32 s{S_M}, 0x3f80\ns_mov_b32 s{S_M+1}, 0x3f800000")
    for r in range(4): gv(f"v_mov_b32 v{A8+r}, 0", d=0)
    def send_items(si, ag):
        st = stages[si]; r = []
        if st == [8]:
            r.append(I("salu", f"s_add_u32 s{S_SX}, s{S_OB}, 8192"))
            for qs in range(4):
                a = acc_of(8, qs)
                r += [I("valu", f"v_cvt_pk_bf16_f32 v{a}, v{a}, v{a+1}"), I("valu", f"v_cvt_pk_bf16_f32 v{a+1}, v{a+2}, v{a+3}", d=0),
                      I("vmem", f"buffer_store_dwordx2 {vr(a,2)}, v{L8}, {S4(SRD_WS)}, s{S_SX if qs >> 1 else S_OB} offen offset:{(qs&1)*512} {ST}", tag=("snd", si))]
        else:
            P = st[0] >> 1
            r.append(I("salu", f"s_add_u32 s{S_SX}, s{S_OB}, {P*4096}"))
            for qs in range(4):
                if qs == 0 and not (P & 1): continue
                a = acc_of(st[0], qs)
                r += [I("valu", f"v_cvt_pk_bf16_f32 v{a+k}, v{a+2*k}, v{a+2*k+1}", d=(1 if k == 0 else 0)) for k in range(4)]
                r.append(I("vmem", f"buffer_store_dwordx4 {vr(a,4)}, v{L16}, {S4(SRD_WS)}, s{S_SX} offen offset:{qs*1024} {ST}", tag=("snd", si)))
        r[0] = dict(r[0], ag=ag)
        return r
    ends = []; f = 9 * KO
    for st in stages: f += (16 - KO) * len(st); ends.append(f)
    for si in range(3): sc.add(send_items(si, G(ends[si]) + 8))
    sal(f"s_lshl2_add_u32 s28, s{S_KQ}, s{S_PFL}")
    sc.add([I("vmem", f"buffer_store_dword v{ONE}, v{ZV}, {S4(SRD_WS)}, s28 offen {ST}", wait=[("snd", 2)], d=CFG.get("pf0", 24))])
    sc.add(send_items(3, G(ends[3]) + 8))
    sc.add([I("vmem", f"buffer_load_dword v{FLG}, v{FV}, {S4(SRD_WS)}, s{S_PFL} offen {FLD}", tag="pf1")])
    R0 = [acc_of(2, 0) + 4 * i for i in range(7)]
    R2 = [acc_of(8, 0) + 2 * i for i in range(8)]
    R1 = [acc_of(0, 1) + 4 * i for i in range(6)] + [acc_of(2, 0) + 28]
    flag_check(sc, f"SP_P1{sfx}", S_PFL, "pf1", f"v_cmp_gt_u32 vcc, 1, v{FLG}", "s_and_b32 s29, vcc_lo, 0xff", G(ends[4]) - CFG.get("pf1", 18))
    def recv(q, regs, slot):
        for k, rg in enumerate(regs):
            if slot == 2:
                q.add([I("vmem", f"buffer_load_dwordx2 {vr(rg,2)}, v{L8}, {S4(SRD_WS)}, s{S_R8[k]} offen offset:{((-k)&1)*512} {DL}", tag=("r", slot, k))])
            else:
                i = k + 1
                q.add([I("vmem", f"buffer_load_dwordx4 {vr(rg,4)}, v{L16B if slot else L16}, {S4(SRD_WS)}, s{S_RS+i} offen offset:{((-i)&3)*1024} {DL}", tag=("r", slot, k))])
    recv(sc, R0, 0)
    mf = []; ds = []
    for f, (t, n) in enumerate(seq):
        for qs in range(4):
            a = acc_of(n, qs)
            m = f"{MF} {vr(a,4)}, {ar(AFR+(f % ARING)*4,4)}, {bfrag(t,qs)}, {'0' if t == 0 else vr(a,4)}"
            if qs == 0 and t >= 4 and n == (0 if t < KO else 8):
                m = (m, [("b", t >> 2, t & 3)])
            mf.append(m)
        if f + PD < len(seq):
            ds += [I("ds", x, 4 * f) for k, x in enumerate(a_rd((f + PD) % ARING, *seq[f + PD]))]
    cut = [0, 4 * 36, 4 * 9 * KO, len(mf)]
    fine = list(range(0, len(mf) + 1, 36)) if CFG.get("pstamp") else cut
    for k, (a, b) in enumerate(zip(fine, fine[1:])):
        run_mfmas(em, mf[a:b], {"ds": [dict(it, g=it["g"] - a) for it in ds if a <= it["g"] < b]}, ["ds"], bgs=[sc, gq])
        if CFG.get("pstamp"): stamp(em, 40 + k, cyc=False)
        if b in cut: stamp(em)
    tail = BG(send_items(4, 0)); tail.q[1] = dict(tail.q[1], w=6)
    drain(em, tail)
    n1 = drain(em, sc); n2 = drain(em, gq)
    if n1 or n2: print("phase 2 leftover", n1, n2)
    q = BG(); recv(q, R2, 2); drain(em, q)
    if CFG.get("pstamp"): stamp(em, 56, cyc=False)
    em.wait_tag(("snd", 4))
    if CFG.get("pstamp"): stamp(em, 57, cyc=False)
    em.vmem(f"buffer_store_dword v{TWO}, v{ZV}, {S4(SRD_WS)}, s28 offen {ST}")
    em.vmem(f"buffer_load_dword v{FLG}, v{FV}, {S4(SRD_WS)}, s{S_PFL} offen {FLD}", "pf2")
    def accumulate(regs, slot, acc, nd):
        for i, rg in enumerate(regs):
            em.wait_tag(("r", slot, i))
            for k in range(nd):
                e(f"v_dot2c_f32_bf16 v{acc+2*k}, s{S_M}, v{rg+k}\nv_dot2c_f32_bf16 v{acc+2*k+1}, s{S_M+1}, v{rg+k}")
        e("s_nop 2")
    def finish(acc, nd, gi, store):
        P = T0
        for k in range(nd): e(f"v_cvt_pk_bf16_f32 v{P+k}, v{acc+2*k}, v{acc+2*k+1}")
        for k in range(nd): e(f"v_lshlrev_b32 v{acc+2*k}, 16, v{P+k}\nv_and_b32 v{acc+2*k+1}, 0xffff0000, v{P+k}")
        for k in range(nd): e(f"v_pk_mul_f32 {vr(acc+2*k,2)}, {vr(acc+2*k,2)}, {vr(GF+gi+2*k,2)}")
        for k in range(nd): e(f"v_cvt_pk_bf16_f32 v{P+k}, v{acc+2*k}, v{acc+2*k+1}")
        for k in range(nd): e(f"v_lshlrev_b32 v{acc+2*k}, 16, v{P+k}\nv_and_b32 v{acc+2*k+1}, 0xffff0000, v{P+k}")
        for k in range(nd): e(f"v_pk_add_f32 {vr(acc+2*k,2)}, {vr(acc+2*k,2)}, {vr(XF+gi+2*k,2)}")
        for k in range(nd): e(f"v_cvt_pk_bf16_f32 v{acc+k}, v{acc+2*k}, v{acc+2*k+1}")
        em.vmem(store)
    a0 = acc_of(0, 0); a1 = acc_of(4, 0)
    accumulate(R0, 0, a0, 4)
    finish(a0, 4, 0, f"buffer_store_dwordx4 {vr(a0,4)}, v{XV}, {S4(SRD_OUT)}, 0 offen")
    if CFG.get("pstamp"): stamp(em, 58, cyc=False)
    em.wait_tag("pf2")
    cmp_, tst = f"v_cmp_gt_u32 vcc, 2, v{FLG}", "s_and_b32 s29, vcc_lo, 0xff"
    e(f"{cmp_}\ns_nop 0\n{tst}\ns_cbranch_scc1 SP_P2{sfx}\nSP_P2{sfx}_RET:")
    spin(f"SP_P2{sfx}", S_PFL, cmp_, tst)
    stamp(em)
    q = BG(); recv(q, R1, 1); drain(em, q)
    accumulate(R2, 2, A8, 2)
    e(f"s_cmp_eq_u32 s{S_B}, 0\ns_cselect_b32 s29, 0, {hex(OOB - 0x400000)}")
    finish(A8, 2, 16, f"buffer_store_dwordx2 {vr(A8,2)}, v{XV8}, {S4(SRD_OUT)}, s29 offen")
    if CFG.get("pstamp"): stamp(em, 59, cyc=False)
    accumulate(R1, 1, a1, 4)
    if CFG.get("pstamp"): stamp(em, 60, cyc=False)
    finish(a1, 4, 8, f"buffer_store_dwordx4 {vr(a1,4)}, v{XV}, {S4(SRD_OUT)}, 0 offen offset:128")
```

```python
import sys, os, copy
sys.path.insert(0, os.path.dirname(__file__))
from lib import *
from layout import *
import lib, core, front, moe, phase2
from core import *
from front import S4, WT, L2K
KN = "recurrent_scan__gqa_block_cached__moe_arch_mod__prompt_kernel"

def build(out):
    prof = CFG.get("prof")
    em = Em(); e = em.e
    ns = [0]
    def stamp(em_, k=None, cyc=True):
        if not prof: return
        if k is None: k = ns[0]; ns[0] += 1
        em_.e("s_memrealtime s[98:99]" + ("\ns_memtime s[96:97]" if cyc else "") + f"\ns_waitcnt lgkmcnt(0)\nv_writelane_b32 v2, s98, {k}" + (f"\nv_writelane_b32 v2, s96, {20+k}" if cyc else ""))
        em_.ds_done = em_.ds - 1
    kernel_head(em, KN)
    front.front(em, KN, stamp)
    stamp(em)
    front.qproj(em, stamp)
    moe.setup(em)
    e(f"s_sub_u32 s28, s2, {YR0}\ns_cmp_lt_u32 s28, {NYR}\ns_cselect_b32 s{S_EVT}, 4, {CFG.get('tchat', 2)}\ns_cmp_lt_u32 s2, {NGD}\ns_cselect_b32 s{S_EVT}, 5, s{S_EVT}")
    assert CFG.get('tchat', 2) <= 4
    stamp(em)
    em.label("K_PRE")
    em.wait_tag(("K", 0)); e("s_barrier")
    em.tags[("body", -2)] = em.vm - 1
    for i in range(8): em.ds_load(kld(0, i))
    if CFG.get("defer", 1):
        emit_items(em, kv_init("K", 2) + kv_init("V", 1))
    e(f"s_add_u32 s{S_KOFF}, s{S_KV0}, {2*16384}\ns_add_u32 s{S_VOFF}, s{S_KV0}, 16384\ns_mul_i32 s{S_WOS}, s{S_WAVE}, 864\ns_mov_b32 s{S_WOM}, s{S_WOS}")
    if CFG["sum"] == "h":
        for i in range(8): e(f"v_accvgpr_write_b32 a{AL+i}, 0")
    for i in range(8):
        kt, s = i >> 2, i & 3
        for qs in range(4): em.mfma(qk(0, kt, s, qs, c0="0"))
        em.ds_load(kld(1, i))
    e("s_nop 7")
    e(f"s_cmp_eq_u32 s{S_PASS}, 0\ns_cbranch_scc0 K_HAVEMAX")
    M = 104
    for qs in range(4):
        b = S0 + qs * 8; m = M + qs
        e(f"v_max3_f32 v{m}, v{b}, v{b+1}, v{b+2}\nv_max3_f32 v{m}, v{m}, v{b+3}, v{b+4}\nv_max3_f32 v{m}, v{m}, v{b+5}, v{b+6}\nv_max_f32 v{m}, v{m}, v{b+7}")
    for sw in ("v_permlane16_swap_b32", "v_permlane32_swap_b32"):
        for qs in range(4): e(f"v_mov_b32 v{M+4+qs}, v{M+qs}")
        for qs in range(4): e(f"{sw} v{M+qs}, v{M+4+qs}")
        for qs in range(4): e(f"v_max_f32 v{M+qs}, v{M+qs}, v{M+4+qs}")
    for qs in range(4):
        for r in range(4): e(f"v_sub_f32 v{NM+qs*4+r}, 0, v{M+qs}")
    em.label("K_HAVEMAX")
    for qs in range(4):
        for x in range(0, 8, 2): e(f"v_pk_add_f32 {vr(S0+qs*8+x,2)}, {vr(S0+qs*8+x,2)}, {vr(NM+qs*4,2)}")
    em.ds_all_done()
    stamp(em)
    em.tags[("body", -1)] = em.vm - 1
    def bar(b):
        return lambda: f"s_waitcnt vmcnt({em.vm_n(em.tags[('body', b-2)])}) lgkmcnt(0)\ns_barrier"
    def must_drain(q, name):
        n = drain(em, q)
        if n: print("leftover", name, n)
    l2 = BG(moe.addr_items() + moe.cand_items(em, em.gap) + moe.level2_items())
    for b in range(8):
        bgs = [l2]
        if b == 5:
            af = BG(moe.afrag_items(range(16))); bgs = [af, l2]
        lib.BGX[0] = CFG.get("bgx", 4) if b >= 3 else 0
        body(em, b, "first", xdma=moe.first_dma, bar=bar(b), bgs=bgs)
        if b == 4: assert not any(it["t"].startswith(f"v_add_u32 v{moe.TD}") for it in l2.q)
        if b == 5: must_drain(af, "afrag")
        if b == 6: must_drain(l2, "level2")
    e(f"s_mov_b32 s{S_LOOP}, 7\ns_cmp_lt_u32 s{S_FB}, 0x10000\ns_cbranch_scc0 K_LOOPIN")
    for b in range(8, 11):
        q = BG({8: [], 9: moe.gu_items(), 10: moe.d_items()}[b])
        body(em, b, "first", bar=bar(b), bgs=[q])
        must_drain(q, f"moe body {b}")
    lib.BGX[0] = 0
    e(f"s_mov_b32 s{S_LOOP}, 6")
    em.label("K_LOOPIN")
    e(f"s_waitcnt lgkmcnt(0)\nv_lshlrev_b32 v{phase2.T256}, 8, v1\ns_mov_b32 s{S_TCH}, {hex(OOB - 0x10000)}")
    stamp(em)
    TI = [[int(x) for x in grp.split("+") if x != ""] for grp in str(CFG.get("tch", "0.128.")).split(".")]
    cnt = [9 + len(t) for t in TI]
    def loop_bodies(em_):
        for j, b in enumerate(range(11, 14)):
            post = [I("salu", f"s_sub_u32 s{S_LOOP}, s{S_LOOP}, 1"), I("salu", f"s_cmp_lg_u32 s{S_LOOP}, 0")] if j == 2 else ()
            body(em_, b, "mid", xdma=(lambda u, j=j: phase2.wo_loop_items() if u & 1 == 0 else [phase2.touch(i) for i in TI[j]]),
                 bar=f"s_waitcnt vmcnt({cnt[j-1]}) lgkmcnt(0)\ns_barrier", post=post)
    dry = Em(); loop_bodies(dry)
    em.ds = dry.ds; em.ds_done = dry.ds_done; em.ldmap = dict(dry.ldmap)
    e(".p2align 6")
    em.label("K_LOOP")
    e(f"s_cmp_eq_u32 s{S_LOOP}, s{S_EVT}\ns_cbranch_scc1 K_EVT")
    em.label("K_EVT_RET")
    loop_bodies(em)
    e("s_cbranch_scc1 K_LOOP")
    em.label("K_LAST")
    stamp(em)
    em.vm = 1 + cnt[2]; em.tags = {("body", 27): 0, ("body", 28): cnt[2]}
    q = BG(phase2.flag_touch_items() + phase2.pattern_items() + phase2.gate_load_items(em))
    lib.BGX[0] = CFG.get("bgx", 4)
    for b in range(29, 32):
        body(em, b, "last", xdma=phase2.last_dma, bar=bar(b), bgs=[q])
    must_drain(q, "pattern")
    lib.BGX[0] = 0
    stamp(em)
    if CFG.get("force") == "mixed": e("s_branch K_MIXED")
    else: e(f"s_cmp_eq_u32 s{S_MODE}, 0\ns_cbranch_scc1 K_MIXED")
    def tail(ST, sfx):
        phase2.epilogue(em, ST, sfx)
        stamp(em)
        phase2.main(em, ST, sfx, stamp)
        if prof:
            e("s_waitcnt vmcnt(0)")
            stamp(em)
            e(f"v_writelane_b32 v2, s{S_XCC}, 62\nv_writelane_b32 v2, s{S_MODE}, 63")
            e(f"s_lshl_b32 s{S_T}, s2, 2\ns_add_u32 s{S_T}, s{S_T}, s{S_WAVE}\ns_lshl_b32 s{S_T}, s{S_T}, 8\ns_add_u32 s{S_T}, s{S_T}, {hex(WS_PROF)}\nv_lshlrev_b32 v5, 2, v1")
            e(f"buffer_store_dword v2, v5, {S4(SRD_WS)}, s{S_T} offen")
    n0 = ns[0]
    tail(CFG.get("st", ""), "A")
    em.label("K_END")
    e("s_endpgm")
    moe.events(em, "K_EVT_RET", lambda em_: front.code_prefetch(em_, "K_LAST", "K_HOT_END", 108, 105, "b", False))
    for c in em.cold: e(c)
    em.cold = []
    em.label("K_HOT_END")
    em.label("K_MIXED")
    ns[0] = n0
    tail(WT, "B")
    e("s_endpgm")
    for c in em.cold: e(c)
    em.label("K_FALLBACK")
    e(f"s_mov_b32 s{S_PASS}, 1\ns_mov_b32 s{S_EVT}, {CFG.get('tchat', 2)}\ns_mov_b32 s{S_FB}, 0x30000\ns_mov_b32 s{SRD_G+2}, 0\ns_mov_b32 s{SRD_U+2}, 0\ns_mov_b32 s{SRD_D+2}, 0")
    e(f"s_waitcnt vmcnt(0) lgkmcnt(0)\ns_barrier\nv_mov_b32 v{front.BFO}, {hex(OOB)}")
    moe.setup(em)
    for qs in range(4): e(f"v_mov_b32 v{NM+4*qs}, 0xff800000")
    e(f"s_mov_b32 s{S_KOFF}, 0\ns_mov_b32 s{S_LOOP}, 32")
    em.label("K_FBLOOP")
    emit_items(em, dma_k(0))
    e("s_waitcnt vmcnt(0)\ns_barrier")
    for half in range(2):
        for i in range(8): e(kld(half, i))
        e("s_waitcnt lgkmcnt(0)")
        for i in range(8):
            for qs in range(4): e(qk(0, i >> 2, i & 3, qs, c0="0"))
        e("s_nop 7\ns_nop 3")
        for qs in range(4):
            b = S0 + qs * 8; m = NM + 4 * qs
            e(f"v_max3_f32 v{m}, v{m}, v{b}, v{b+1}\nv_max3_f32 v{m}, v{m}, v{b+2}, v{b+3}\nv_max3_f32 v{m}, v{m}, v{b+4}, v{b+5}\nv_max3_f32 v{m}, v{m}, v{b+6}, v{b+7}")
    e("s_barrier")
    e(f"s_add_u32 s{S_KOFF}, s{S_KOFF}, 16384\ns_sub_u32 s{S_LOOP}, s{S_LOOP}, 1\ns_cmp_lg_u32 s{S_LOOP}, 0\ns_cbranch_scc1 K_FBLOOP")
    for qs in range(4):
        m = NM + 4 * qs
        rowmax_groups(em, m, TMP)
        e(f"v_sub_f32 v{m}, 0, v{m}")
        for r in range(1, 4): e(f"v_mov_b32 v{m+r}, v{m}")
    for kind, T in (("K", 0), ("K", 1), ("V", 0), ("K", 2), ("V", 1))[:3 if CFG.get("defer", 1) else 5]:
        emit_items(em, kv_init(kind, T))
    e("s_waitcnt vmcnt(0)")
    e("s_branch K_PRE")
    em.label("K_CODE_END")
    L2 = []
    for line in em.L:
        L2.append(line)
        if line.startswith("s_sleep"): L2 += ["s_add_u32 s100, s100, 1", "s_bitcmp1_b32 s100, 19", "s_cbranch_scc1 K_END"]
    em.L = L2
    hdr = open(os.path.join(os.path.dirname(__file__), "header.txt")).read()
    s = hdr + f"; @launch grid=(256,1,1) block=(256,1,1) lds={LDS_TOTAL}\n" + '.amdgcn_target "amdgcn-amd-amdhsa--gfx950"\n.text\n' + em.text()
    s += '.section .rodata,"a"\n.p2align 6\n' + kernel_desc(KN, 512, 102, 256)
    open(out, "w").write(s)
    print(out, "min DS distance", em.minN, "stamps", ns[0], "bytes", len(s))

if __name__ == "__main__":
    CFG.update(sum="h", ahead=4, wr2=0, nu0=4, nu=8, bars="5.8.11.14", kvat="12.14.16")
    for o in sys.argv[2:]:
        k, _, v = o.partition("=")
        CFG[k] = int(v) if v.lstrip("-").isdigit() else v
    if "vcost" in CFG: lib.VCOST[0] = CFG["vcost"]
    build(sys.argv[1])
```
